```python
import torch

def _softmax(x, axis=-1):
    return torch.softmax(x, dim=axis)
def _gelu(x):
    return torch.nn.functional.gelu(x, approximate="tanh")
def _silu(x):
    return torch.nn.functional.silu(x)
def _sigmoid(x):
    return torch.sigmoid(x)
def _layernorm(x, axis=-1, eps=1e-5):
    m = x.mean(dim=axis, keepdim=True)
    v = x.var(dim=axis, keepdim=True, unbiased=False)
    return (x - m) / torch.sqrt(v + eps)
def _scatter_add(tgt, idx, src, axis=0):
    return tgt.clone().index_add_(axis, idx, src)
def _segment_sum(src, seg, n):
    out = torch.zeros((n,) + src.shape[1:], dtype=src.dtype)
    return out.index_add_(0, seg, src)
def _pad(x, pw):
    flat = tuple(v for pair in reversed(pw) for v in pair)
    return torch.nn.functional.pad(x, flat)

kernel_name = 'standalone__low_rank_proj_linformer__sampling'

def setup_inputs():

    _w = (lambda a: (lambda t: t.to(torch.bfloat16) if t.is_floating_point() else t)(torch.as_tensor(a)))
    B, H, Sq, Skv, Dh, R = 8, 32, 8, 4096, 128, 16
    return {
        "q": _w((lambda *s: torch.randn(*s, dtype=torch.bfloat16) * 0.8)(B, H, Sq, Dh)),
        "k": _w((lambda *s: torch.randn(*s, dtype=torch.bfloat16) * 0.8)(B, H, Skv, Dh)),
        "v": _w((lambda *s: torch.randn(*s, dtype=torch.bfloat16) * 0.05)(B, H, Skv, Dh)),
        "e_proj": _w((lambda *s: torch.randn(*s, dtype=torch.bfloat16) * 0.8)(R, Skv) * (Skv ** -0.5)),
        "f_proj": _w((lambda *s: torch.randn(*s, dtype=torch.bfloat16) * 0.05)(R, Skv) * (Skv ** -0.5)),
    }

def reference(q, k, v, e_proj, f_proj):
    B, H, Sq, Dh = q.shape
    kp = torch.einsum("rn,bhnd->bhrd", e_proj, k)
    vp = torch.einsum("rn,bhnd->bhrd", f_proj, v)
    scores = torch.einsum("bhqd,bhrd->bhqr", q, kp) * (Dh ** -0.5)
    p = _softmax(scores, axis=-1)
    o = torch.einsum("bhqr,bhrd->bhqd", p, vp)
    return o
```

```python
import sys

NAME = "standalone__low_rank_proj_linformer__sampling"

HEADER = """; Kernarg layout for this problem (64 bytes, ptrs only, base s[0:1]):
"""


def gen(nw=1, depth=7, order="contig", cache="nt", pcache="", stamp=0, rot=0, minlds=0):
    nw = int(nw); depth = int(depth); stamp = int(stamp); rot = int(rot); minlds = int(minlds)
    L = []
    A = L.append
    nthreads = 2 * nw * 64
    nblk = 128 // nw
    lds_part = 2 * (nw - 1) * 8192
    lds_p = lds_part
    lds = max(lds_part + 512, minlds)

    VD = 16
    nv = VD + 32 * depth
    nv = max(nv, 16 + 64)
    acc_off = (nv + 3) // 4 * 4
    AQ = 32
    AP = 48
    na = AP + 4 * depth
    total = acc_off + na
    assert acc_off <= 256 and total <= 512

    A(HEADER + f"; @launch grid=(256,1,1) block=({nthreads},1,1) lds={lds}")
    A('.amdgcn_target "amdgcn-amd-amdhsa--gfx950"')
    A(".text")
    A(f".globl {NAME}_kernel")
    A(".p2align 8")
    A(f".type {NAME}_kernel,@function")
    A(f"{NAME}_kernel:")
    A("    s_cmp_ge_u32 s2, 256")
    A("    s_cbranch_scc1 L_end")
    A("    s_load_dwordx16 s[4:19], s[0:1], 0")
    if stamp:
        A("    s_memrealtime s[60:61]")
    A("    v_lshrrev_b32 v4, 6, v0")
    A("    v_and_b32 v5, 63, v0                ; lane")
    A("    v_readfirstlane_b32 s36, v4")
    A("    v_lshrrev_b32 v6, 4, v5             ; g")
    A("    v_and_b32 v7, 15, v5                ; c")
    A("    v_lshlrev_b32 v1, 11, v6")
    A("    v_lshl_add_u32 v1, v7, 4, v1")
    A("    v_lshlrev_b32 v2, 13, v7")
    A("    v_lshl_add_u32 v2, v6, 4, v2")
    A("    v_lshlrev_b32 v3, 4, v5             ; lane*16")
    A("    s_mov_b32 s37, 0x05040100")
    A("    s_mov_b32 s38, 0x07060302")
    A(f"    s_and_b32 s41, s36, {nw-1}")
    if order == "contig":
        A(f"    s_mul_i32 s42, s41, {nblk}")
        step = 1
    else:
        A("    s_mov_b32 s42, s41")
        step = nw
    A("    s_lshl_b32 s43, s2, 20")
    A("    s_lshl_b32 s44, s2, 11")
    A("    s_mov_b32 s22, 0x100000")
    A("    s_mov_b32 s23, 0x20000")
    A("    s_mov_b32 s26, 0x20000")
    A("    s_mov_b32 s27, 0x20000")
    A("    s_mov_b32 s30, 2048")
    A("    s_mov_b32 s31, 0x20000")
    if rot:
        A(f"    s_mul_i32 s45, s2, {rot}")
        A(f"    s_and_b32 s45, s45, {nblk-1}")
    else:
        A("    s_mov_b32 s45, 0")
    for i in range(32):
        A(f"    v_accvgpr_write_b32 a{i}, 0")
    A(f"    s_cmp_ge_u32 s36, {nw}")
    A("    s_waitcnt lgkmcnt(0)")
    A("    s_cselect_b32 s20, s8, s6")
    A("    s_cselect_b32 s21, s9, s7")
    A("    s_cselect_b32 s24, s12, s10")
    A("    s_cselect_b32 s25, s13, s11")
    A("    s_cselect_b32 s28, s14, s4")
    A("    s_cselect_b32 s29, s15, s5")
    A("    s_add_u32 s20, s20, s43")
    A("    s_addc_u32 s21, s21, 0")
    A("    s_add_u32 s28, s28, s44")
    A("    s_addc_u32 s29, s29, 0")

    def set_offsets():
        if step == 1:
            A("    s_add_u32 s46, s42, s45")
        else:
            A(f"    s_mul_i32 s46, s45, {step}")
            A("    s_add_u32 s46, s46, s42")
        A("    s_lshl_b32 s39, s46, 13")
        A("    s_lshl_b32 s40, s46, 6")
        A("    s_add_u32 s45, s45, 1")
        if rot:
            A(f"    s_and_b32 s45, s45, {nblk-1}")

    cf = (" " + cache) if cache else ""
    pf = (" " + pcache) if pcache else ""

    def issue(b):
        set_offsets()
        base = VD + 32 * b
        for j in range(8):
            r = base + 4 * j
            off = f" offset:{256*j}" if j else ""
            A(f"    buffer_load_dwordx4 v[{r}:{r+3}], v1, s[20:23], s39 offen{off}{cf}")
        r = AP + 4 * b
        A(f"    buffer_load_dwordx4 a[{r}:{r+3}], v2, s[24:27], s40 offen{pf}")

    def compute(b, isv):
        base = VD + 32 * b
        pa = AP + 4 * b

        def perms(i):
            t = 8 + 4 * (i & 1)
            sel = "s38" if (i & 1) else "s37"
            for p in range(4):
                lo = base + 4 * (2 * p) + (i >> 1)
                hi = base + 4 * (2 * p + 1) + (i >> 1)
                A(f"    v_perm_b32 v{t+p}, v{hi}, v{lo}, {sel}")

        def mfma(i):
            t = 8 + 4 * (i & 1)
            if isv:
                A(f"    v_mfma_f32_16x16x32_bf16 a[{4*i}:{4*i+3}], a[{pa}:{pa+3}], v[{t}:{t+3}], a[{4*i}:{4*i+3}]")
            else:
                A(f"    v_mfma_f32_16x16x32_bf16 a[{4*i}:{4*i+3}], v[{t}:{t+3}], a[{pa}:{pa+3}], a[{4*i}:{4*i+3}]")
        perms(0)
        for i in range(8):
            if i + 1 < 8:
                perms(i + 1)
            else:
                A("    s_nop 1")
            mfma(i)

    d0 = min(depth, nblk)
    for b in range(d0):
        issue(b)
    A(f"    s_cmp_ge_u32 s36, {nw}")
    A("    s_cbranch_scc1 L_v")

    def mainloop(isv):
        tag = "v" if isv else "k"
        extra = 0
        iters = (nblk - d0) // depth
        if iters > 0:
            A(f"    s_mov_b32 s47, {iters}")
            A(f"L_loop_{tag}:")
            for b in range(depth):
                A(f"    s_waitcnt vmcnt({9*(depth-1)})")
                compute(b, isv)
                issue(b)
            A("    s_sub_u32 s47, s47, 1")
            A("    s_cmp_lg_u32 s47, 0")
            A(f"    s_cbranch_scc1 L_loop_{tag}")
        rem_issue = nblk - d0 - iters * depth
        rem = d0 + rem_issue
        outstanding = d0
        qloaded = False
        for t in range(rem):
            b = t % depth
            w = 9 * (outstanding - 1) + (4 if qloaded else 0)
            A(f"    s_waitcnt vmcnt({w})")
            compute(b, isv)
            outstanding -= 1
            if t < rem_issue:
                issue(b)
                outstanding += 1
            if t == rem_issue and not isv:
                A("    v_lshlrev_b32 v4, 8, v7")
                A("    v_lshl_add_u32 v4, v6, 6, v4        ; c*256 + g*64")
                for kk in range(4):
                    r = AQ + 4 * kk
                    off = f" offset:{16*kk}" if kk else ""
                    A(f"    buffer_load_dwordx4 a[{r}:{r+3}], v4, s[28:31], 0 offen{off}")
                qloaded = True
        if stamp:
            A("    s_memrealtime s[62:63]")
            A("    s_waitcnt lgkmcnt(0)")
        A("    s_nop 7")
        if nw > 1:
            A("    s_cmp_eq_u32 s41, 0")
            A(f"    s_cbranch_scc1 L_red_{tag}")
            A(f"    s_sub_u32 s46, s41, 1")
            A("    s_lshl_b32 s46, s46, 13")
            if isv:
                A(f"    s_add_u32 s46, s46, {(nw-1)*8192}")
            A("    v_add_u32 v4, s46, v3")
            for i in range(8):
                A(f"    ds_write_b128 v4, a[{4*i}:{4*i+3}] offset:{1024*i}")
            A("    s_waitcnt lgkmcnt(0)")
            A("    s_barrier")
            if stamp:
                A(f"    s_branch L_stamp")
            else:
                A("    s_endpgm")
            A(f"L_red_{tag}:")
        for i in range(32):
            A(f"    v_accvgpr_read_b32 v{16+i}, a{i}")
        if nw > 1:
            A("    s_barrier")
            for w in range(nw - 1):
                off0 = ((nw - 1) * 8192 if isv else 0) + w * 8192
                if off0 + 7 * 1024 >= 65536:
                    A(f"    v_add_u32 v4, {off0}, v3")
                    areg, off0 = "v4", 0
                else:
                    areg = "v3"
                for i in range(8):
                    A(f"    ds_read_b128 v[{48+4*i}:{48+4*i+3}], {areg} offset:{off0+1024*i}")
                for i in range(8):
                    A(f"    s_waitcnt lgkmcnt({7-i})")
                    for r in range(4):
                        A(f"    v_add_f32 v{16+4*i+r}, v{16+4*i+r}, v{48+4*i+r}")
        if not isv:
            for kk in range(4):
                for p in range(4):
                    A(f"    v_cvt_pk_bf16_f32 v{48+4*kk+p}, v{16+4*(2*p)+kk}, v{16+4*(2*p+1)+kk}")
            A("    s_waitcnt vmcnt(0)")
            A("    s_nop 1")
            for kk in range(4):
                c = "0" if kk == 0 else "v[8:11]"
                A(f"    v_mfma_f32_16x16x32_bf16 v[8:11], v[{48+4*kk}:{48+4*kk+3}], a[{AQ+4*kk}:{AQ+4*kk+3}], {c}")
            A("    s_mov_b32 s46, 0x3db504f3          ; 128^-0.5")
            A("    s_mov_b32 s48, 0x3fb8aa3b          ; log2(e)")
            A("    s_mov_b32 s49, 0xffff0000")
            A("    s_nop 5")
            A("    v_cvt_pk_bf16_f32 v12, v8, v9")
            A("    v_cvt_pk_bf16_f32 v13, v10, v11")
            A("    v_lshlrev_b32 v8, 16, v12")
            A("    v_and_b32 v9, s49, v12")
            A("    v_lshlrev_b32 v10, 16, v13")
            A("    v_and_b32 v11, s49, v13")
            for r in range(4):
                A(f"    v_mul_f32 v{8+r}, s46, v{8+r}")
            A("    v_cvt_pk_bf16_f32 v12, v8, v9")
            A("    v_cvt_pk_bf16_f32 v13, v10, v11")
            A("    v_lshlrev_b32 v8, 16, v12")
            A("    v_and_b32 v9, s49, v12")
            A("    v_lshlrev_b32 v10, 16, v13")
            A("    v_and_b32 v11, s49, v13")
            A("    v_max_f32 v12, v8, v9")
            A("    v_max3_f32 v12, v10, v11, v12")
            A("    v_mov_b32 v13, v12")
            A("    s_nop 1")
            A("    v_permlane16_swap_b32 v12, v13")
            A("    v_max_f32 v12, v12, v13")
            A("    v_mov_b32 v13, v12")
            A("    s_nop 1")
            A("    v_permlane32_swap_b32 v12, v13")
            A("    v_max_f32 v12, v12, v13")
            for r in range(4):
                A(f"    v_sub_f32 v{8+r}, v{8+r}, v12")
            for r in range(4):
                A(f"    v_mul_f32 v{8+r}, s48, v{8+r}")
            for r in range(4):
                A(f"    v_exp_f32 v{8+r}, v{8+r}")
            A("    s_nop 0")
            A("    v_add_f32 v12, v8, v9")
            A("    v_add_f32 v13, v10, v11")
            A("    v_add_f32 v12, v12, v13")
            A("    v_mov_b32 v13, v12")
            A("    s_nop 1")
            A("    v_permlane16_swap_b32 v12, v13")
            A("    v_add_f32 v12, v12, v13")
            A("    v_mov_b32 v13, v12")
            A("    s_nop 1")
            A("    v_permlane32_swap_b32 v12, v13")
            A("    v_add_f32 v12, v12, v13")
            A("    v_rcp_f32 v12, v12")
            A("    s_nop 0")
            for r in range(4):
                A(f"    v_mul_f32 v{8+r}, v{8+r}, v12")
            A("    v_cvt_pk_bf16_f32 v12, v8, v9")
            A("    v_cvt_pk_bf16_f32 v13, v10, v11")
            A("    v_lshrrev_b32 v4, 1, v3              ; lane*8")
            A(f"    v_add_u32 v4, {lds_p}, v4")
            A(f"    ds_write_b64 v4, v[12:13]")
            A("    s_waitcnt lgkmcnt(0)")
            A("    s_barrier")
            if stamp:
                A(f"    s_branch L_stamp")
            else:
                A("    s_endpgm")
        else:
            for i in range(8):
                A(f"    v_cvt_pk_bf16_f32 v{48+2*i}, v{16+4*i}, v{16+4*i+1}")
                A(f"    v_cvt_pk_bf16_f32 v{48+2*i+1}, v{16+4*i+2}, v{16+4*i+3}")
            A("    v_lshrrev_b32 v4, 1, v3              ; lane*8")
            A(f"    v_add_u32 v4, {lds_p}, v4")
            A("    v_lshlrev_b32 v5, 10, v6")
            A("    v_lshl_add_u32 v5, v7, 4, v5")
            A("    s_barrier")
            A("    ds_read_b64 v[12:13], v4")
            A("    s_waitcnt lgkmcnt(0)")
            for i in range(8):
                A(f"    v_mfma_f32_16x16x16_bf16 v[{16+4*i}:{16+4*i+3}], v[12:13], v[{48+2*i}:{48+2*i+1}], 0")
            A("    s_nop 7")
            for r in range(4):
                for p in range(4):
                    A(f"    v_cvt_pk_bf16_f32 v{64+4*r+p}, v{16+4*(2*p)+r}, v{16+4*(2*p+1)+r}")
                off = f" offset:{256*r}" if r else ""
                A(f"    buffer_store_dwordx4 v[{64+4*r}:{64+4*r+3}], v5, s[28:31], 0 offen{off}")
            if stamp:
                A("    s_waitcnt vmcnt(0)")
                A(f"    s_branch L_stamp")
            else:
                A("    s_endpgm")

    mainloop(False)
    A("L_v:")
    mainloop(True)
    if stamp:
        A("L_stamp:")
        A("    s_memrealtime s[64:65]")
        A("    s_getreg_b32 s66, hwreg(HW_REG_XCC_ID)")
        A("    s_getreg_b32 s67, hwreg(HW_REG_HW_ID)")
        A("    s_waitcnt lgkmcnt(0)")
        A(f"    s_mul_i32 s46, s2, {2*nw}")
        A("    s_add_u32 s46, s46, s36")
        A("    s_lshl_b32 s46, s46, 5")
        A("    v_mov_b32 v8, s60")
        A("    v_mov_b32 v9, s61")
        A("    v_mov_b32 v10, s62")
        A("    v_mov_b32 v11, s63")
        A("    v_mov_b32 v12, s64")
        A("    v_mov_b32 v13, s65")
        A("    v_mov_b32 v14, s66")
        A("    v_mov_b32 v15, s67")
        A("    v_mov_b32 v4, s46")
        A("    s_mov_b64 exec, 1")
        A("    global_store_dwordx4 v4, v[8:11], s[18:19]")
        A("    global_store_dwordx4 v4, v[12:15], s[18:19] offset:16")
    A("L_end:")
    A("    s_endpgm")
    A('.section .rodata,"a"')
    A(".p2align 6")
    A(f".amdhsa_kernel {NAME}_kernel")
    A(f"  .amdhsa_next_free_vgpr {total}")
    A("  .amdhsa_next_free_sgpr 72")
    A(f"  .amdhsa_accum_offset {acc_off}")
    A("  .amdhsa_group_segment_fixed_size 0")
    A("  .amdhsa_kernarg_size 64")
    A("  .amdhsa_user_sgpr_count 2")
    A("  .amdhsa_user_sgpr_kernarg_segment_ptr 1")
    A("  .amdhsa_system_sgpr_workgroup_id_x 1")
    A("  .amdhsa_float_denorm_mode_32 3")
    A(".end_amdhsa_kernel")
    return "\n".join(L) + "\n"


if __name__ == "__main__":
    out = sys.argv[1]
    kw = dict(a.split("=", 1) for a in sys.argv[2:])
    open(out, "w").write(gen(**kw))
```

```python
import sys

NAME = "standalone__low_rank_proj_linformer__sampling"

HEADER = """; Kernarg layout for this problem (64 bytes, ptrs only, base s[0:1]):
"""


def gen(nw=1, depth=7, order="contig", cache="nt", pcache="", stamp=0, rot=0, minlds=0):
    nw = int(nw); depth = int(depth); stamp = int(stamp); rot = int(rot); minlds = int(minlds)
    L = []
    A = L.append
    nthreads = 2 * nw * 64
    nblk = 128 // nw
    lds_part = 2 * (nw - 1) * 8192
    lds_p = lds_part
    lds = max(lds_part + 512, minlds)

    VD = 16
    nv = VD + 32 * depth
    nv = max(nv, 16 + 64)
    acc_off = (nv + 3) // 4 * 4
    lateq = (nw == 8)
    AQ = 0 if lateq else 32
    AP = 32 if lateq else 48
    na = AP + 4 * depth
    total = acc_off + na
    assert acc_off <= 256 and total <= 512
    alloc = (total + 7) // 8 * 8
    assert (512 // alloc) * 4 >= 2 * nw, (total, nw)

    A(HEADER + f"; @launch grid=(256,1,1) block=({nthreads},1,1) lds={lds}")
    A('.amdgcn_target "amdgcn-amd-amdhsa--gfx950"')
    A(".text")
    A(f".globl {NAME}_kernel")
    A(".p2align 8")
    A(f".type {NAME}_kernel,@function")
    A(f"{NAME}_kernel:")
    A("    s_cmp_ge_u32 s2, 256")
    A("    s_cbranch_scc1 L_end")
    A("    s_load_dwordx16 s[4:19], s[0:1], 0")
    if stamp:
        A("    s_memrealtime s[60:61]")
    A("    v_lshrrev_b32 v4, 6, v0")
    A("    v_and_b32 v5, 63, v0                ; lane")
    A("    v_readfirstlane_b32 s36, v4")
    A("    v_lshrrev_b32 v6, 4, v5             ; g")
    A("    v_and_b32 v7, 15, v5                ; c")
    A("    v_lshlrev_b32 v1, 11, v6")
    A("    v_lshl_add_u32 v1, v7, 4, v1")
    A("    v_lshlrev_b32 v2, 13, v7")
    A("    v_lshl_add_u32 v2, v6, 4, v2")
    A("    v_lshlrev_b32 v3, 4, v5             ; lane*16")
    A("    s_mov_b32 s37, 0x05040100")
    A("    s_mov_b32 s38, 0x07060302")
    A(f"    s_and_b32 s41, s36, {nw-1}")
    if order == "contig":
        A(f"    s_mul_i32 s42, s41, {nblk}")
        step = 1
    else:
        A("    s_mov_b32 s42, s41")
        step = nw
    A("    s_lshl_b32 s43, s2, 20")
    A("    s_lshl_b32 s44, s2, 11")
    A("    s_mov_b32 s22, 0x100000")
    A("    s_mov_b32 s23, 0x20000")
    A("    s_mov_b32 s26, 0x20000")
    A("    s_mov_b32 s27, 0x20000")
    A("    s_mov_b32 s30, 2048")
    A("    s_mov_b32 s31, 0x20000")
    if rot:
        A(f"    s_mul_i32 s45, s2, {rot}")
        A(f"    s_and_b32 s45, s45, {nblk-1}")
    else:
        A("    s_mov_b32 s45, 0")
    for i in range(32):
        A(f"    v_accvgpr_write_b32 a{i}, 0")
    A(f"    s_cmp_ge_u32 s36, {nw}")
    A("    s_waitcnt lgkmcnt(0)")
    A("    s_cselect_b32 s20, s8, s6")
    A("    s_cselect_b32 s21, s9, s7")
    A("    s_cselect_b32 s24, s12, s10")
    A("    s_cselect_b32 s25, s13, s11")
    A("    s_cselect_b32 s28, s14, s4")
    A("    s_cselect_b32 s29, s15, s5")
    A("    s_add_u32 s20, s20, s43")
    A("    s_addc_u32 s21, s21, 0")
    A("    s_add_u32 s28, s28, s44")
    A("    s_addc_u32 s29, s29, 0")

    def set_offsets():
        if step == 1:
            A("    s_add_u32 s46, s42, s45")
        else:
            A(f"    s_mul_i32 s46, s45, {step}")
            A("    s_add_u32 s46, s46, s42")
        A("    s_lshl_b32 s39, s46, 13")
        A("    s_lshl_b32 s40, s46, 6")
        A("    s_add_u32 s45, s45, 1")
        if rot:
            A(f"    s_and_b32 s45, s45, {nblk-1}")

    cf = (" " + cache) if cache else ""
    pf = (" " + pcache) if pcache else ""

    def issue(b):
        set_offsets()
        base = VD + 32 * b
        for j in range(8):
            r = base + 4 * j
            off = f" offset:{256*j}" if j else ""
            A(f"    buffer_load_dwordx4 v[{r}:{r+3}], v1, s[20:23], s39 offen{off}{cf}")
        r = AP + 4 * b
        A(f"    buffer_load_dwordx4 a[{r}:{r+3}], v2, s[24:27], s40 offen{pf}")

    def compute(b, isv):
        base = VD + 32 * b
        pa = AP + 4 * b

        def perms(i):
            t = 8 + 4 * (i & 1)
            sel = "s38" if (i & 1) else "s37"
            for p in range(4):
                lo = base + 4 * (2 * p) + (i >> 1)
                hi = base + 4 * (2 * p + 1) + (i >> 1)
                A(f"    v_perm_b32 v{t+p}, v{hi}, v{lo}, {sel}")

        def mfma(i):
            t = 8 + 4 * (i & 1)
            if isv:
                A(f"    v_mfma_f32_16x16x32_bf16 a[{4*i}:{4*i+3}], a[{pa}:{pa+3}], v[{t}:{t+3}], a[{4*i}:{4*i+3}]")
            else:
                A(f"    v_mfma_f32_16x16x32_bf16 a[{4*i}:{4*i+3}], v[{t}:{t+3}], a[{pa}:{pa+3}], a[{4*i}:{4*i+3}]")
        perms(0)
        for i in range(8):
            if i + 1 < 8:
                perms(i + 1)
            else:
                A("    s_nop 1")
            mfma(i)

    d0 = min(depth, nblk)
    for b in range(d0):
        issue(b)
    A(f"    s_cmp_ge_u32 s36, {nw}")
    A("    s_cbranch_scc1 L_v")

    def mainloop(isv):
        tag = "v" if isv else "k"
        extra = 0
        iters = (nblk - d0) // depth
        if iters > 0:
            A(f"    s_mov_b32 s47, {iters}")
            A(f"L_loop_{tag}:")
            for b in range(depth):
                A(f"    s_waitcnt vmcnt({9*(depth-1)})")
                compute(b, isv)
                issue(b)
            A("    s_sub_u32 s47, s47, 1")
            A("    s_cmp_lg_u32 s47, 0")
            A(f"    s_cbranch_scc1 L_loop_{tag}")
        rem_issue = nblk - d0 - iters * depth
        rem = d0 + rem_issue
        outstanding = d0
        qloaded = False
        for t in range(rem):
            b = t % depth
            w = 9 * (outstanding - 1) + (4 if qloaded else 0)
            A(f"    s_waitcnt vmcnt({w})")
            compute(b, isv)
            outstanding -= 1
            if t < rem_issue:
                issue(b)
                outstanding += 1
            if t == rem_issue and not isv and not lateq:
                A("    v_lshlrev_b32 v4, 8, v7")
                A("    v_lshl_add_u32 v4, v6, 6, v4        ; c*256 + g*64")
                for kk in range(4):
                    r = AQ + 4 * kk
                    off = f" offset:{16*kk}" if kk else ""
                    A(f"    buffer_load_dwordx4 a[{r}:{r+3}], v4, s[28:31], 0 offen{off}")
                qloaded = True
        if stamp:
            A("    s_memrealtime s[62:63]")
            A("    s_waitcnt lgkmcnt(0)")
        A("    s_nop 7")
        if nw > 1:
            A("    s_cmp_eq_u32 s41, 0")
            A(f"    s_cbranch_scc1 L_red_{tag}")
            A(f"    s_sub_u32 s46, s41, 1")
            A("    s_lshl_b32 s46, s46, 13")
            if isv:
                A(f"    s_add_u32 s46, s46, {(nw-1)*8192}")
            A("    v_add_u32 v4, s46, v3")
            for i in range(8):
                A(f"    ds_write_b128 v4, a[{4*i}:{4*i+3}] offset:{1024*i}")
            A("    s_waitcnt lgkmcnt(0)")
            A("    s_barrier")
            if stamp:
                A(f"    s_branch L_stamp")
            else:
                A("    s_endpgm")
            A(f"L_red_{tag}:")
        for i in range(32):
            A(f"    v_accvgpr_read_b32 v{16+i}, a{i}")
        if lateq and not isv:
            A("    v_lshlrev_b32 v5, 8, v7")
            A("    v_lshl_add_u32 v5, v6, 6, v5        ; c*256 + g*64")
            for kk in range(4):
                r = AQ + 4 * kk
                off = f" offset:{16*kk}" if kk else ""
                A(f"    buffer_load_dwordx4 a[{r}:{r+3}], v5, s[28:31], 0 offen{off}")
        if nw > 1:
            A("    s_barrier")
            for w in range(nw - 1):
                off0 = ((nw - 1) * 8192 if isv else 0) + w * 8192
                if off0 + 7 * 1024 >= 65536:
                    A(f"    v_add_u32 v4, {off0}, v3")
                    areg, off0 = "v4", 0
                else:
                    areg = "v3"
                for i in range(8):
                    A(f"    ds_read_b128 v[{48+4*i}:{48+4*i+3}], {areg} offset:{off0+1024*i}")
                for i in range(8):
                    A(f"    s_waitcnt lgkmcnt({7-i})")
                    for r in range(4):
                        A(f"    v_add_f32 v{16+4*i+r}, v{16+4*i+r}, v{48+4*i+r}")
        if not isv:
            for kk in range(4):
                for p in range(4):
                    A(f"    v_cvt_pk_bf16_f32 v{48+4*kk+p}, v{16+4*(2*p)+kk}, v{16+4*(2*p+1)+kk}")
            A("    s_waitcnt vmcnt(0)")
            A("    s_nop 1")
            for kk in range(4):
                c = "0" if kk == 0 else "v[8:11]"
                A(f"    v_mfma_f32_16x16x32_bf16 v[8:11], v[{48+4*kk}:{48+4*kk+3}], a[{AQ+4*kk}:{AQ+4*kk+3}], {c}")
            A("    s_mov_b32 s46, 0x3db504f3          ; 128^-0.5")
            A("    s_mov_b32 s48, 0x3fb8aa3b          ; log2(e)")
            A("    s_mov_b32 s49, 0xffff0000")
            A("    s_nop 5")
            A("    v_cvt_pk_bf16_f32 v12, v8, v9")
            A("    v_cvt_pk_bf16_f32 v13, v10, v11")
            A("    v_lshlrev_b32 v8, 16, v12")
            A("    v_and_b32 v9, s49, v12")
            A("    v_lshlrev_b32 v10, 16, v13")
            A("    v_and_b32 v11, s49, v13")
            for r in range(4):
                A(f"    v_mul_f32 v{8+r}, s46, v{8+r}")
            A("    v_cvt_pk_bf16_f32 v12, v8, v9")
            A("    v_cvt_pk_bf16_f32 v13, v10, v11")
            A("    v_lshlrev_b32 v8, 16, v12")
            A("    v_and_b32 v9, s49, v12")
            A("    v_lshlrev_b32 v10, 16, v13")
            A("    v_and_b32 v11, s49, v13")
            A("    v_max_f32 v12, v8, v9")
            A("    v_max3_f32 v12, v10, v11, v12")
            A("    v_mov_b32 v13, v12")
            A("    s_nop 1")
            A("    v_permlane16_swap_b32 v12, v13")
            A("    v_max_f32 v12, v12, v13")
            A("    v_mov_b32 v13, v12")
            A("    s_nop 1")
            A("    v_permlane32_swap_b32 v12, v13")
            A("    v_max_f32 v12, v12, v13")
            for r in range(4):
                A(f"    v_sub_f32 v{8+r}, v{8+r}, v12")
            for r in range(4):
                A(f"    v_mul_f32 v{8+r}, s48, v{8+r}")
            for r in range(4):
                A(f"    v_exp_f32 v{8+r}, v{8+r}")
            A("    s_nop 0")
            A("    v_add_f32 v12, v8, v9")
            A("    v_add_f32 v13, v10, v11")
            A("    v_add_f32 v12, v12, v13")
            A("    v_mov_b32 v13, v12")
            A("    s_nop 1")
            A("    v_permlane16_swap_b32 v12, v13")
            A("    v_add_f32 v12, v12, v13")
            A("    v_mov_b32 v13, v12")
            A("    s_nop 1")
            A("    v_permlane32_swap_b32 v12, v13")
            A("    v_add_f32 v12, v12, v13")
            A("    v_rcp_f32 v12, v12")
            A("    s_nop 0")
            for r in range(4):
                A(f"    v_mul_f32 v{8+r}, v{8+r}, v12")
            A("    v_cvt_pk_bf16_f32 v12, v8, v9")
            A("    v_cvt_pk_bf16_f32 v13, v10, v11")
            A("    v_lshrrev_b32 v4, 1, v3              ; lane*8")
            A(f"    v_add_u32 v4, {lds_p}, v4")
            A(f"    ds_write_b64 v4, v[12:13]")
            A("    s_waitcnt lgkmcnt(0)")
            A("    s_barrier")
            if stamp:
                A(f"    s_branch L_stamp")
            else:
                A("    s_endpgm")
        else:
            for i in range(8):
                A(f"    v_cvt_pk_bf16_f32 v{48+2*i}, v{16+4*i}, v{16+4*i+1}")
                A(f"    v_cvt_pk_bf16_f32 v{48+2*i+1}, v{16+4*i+2}, v{16+4*i+3}")
            A("    v_lshrrev_b32 v4, 1, v3              ; lane*8")
            A(f"    v_add_u32 v4, {lds_p}, v4")
            A("    v_lshlrev_b32 v5, 10, v6")
            A("    v_lshl_add_u32 v5, v7, 4, v5")
            A("    s_barrier")
            A("    ds_read_b64 v[12:13], v4")
            A("    s_waitcnt lgkmcnt(0)")
            for i in range(8):
                A(f"    v_mfma_f32_16x16x16_bf16 v[{16+4*i}:{16+4*i+3}], v[12:13], v[{48+2*i}:{48+2*i+1}], 0")
            A("    s_nop 7")
            for r in range(4):
                for p in range(4):
                    A(f"    v_cvt_pk_bf16_f32 v{64+4*r+p}, v{16+4*(2*p)+r}, v{16+4*(2*p+1)+r}")
                off = f" offset:{256*r}" if r else ""
                A(f"    buffer_store_dwordx4 v[{64+4*r}:{64+4*r+3}], v5, s[28:31], 0 offen{off}")
            if stamp:
                A("    s_waitcnt vmcnt(0)")
                A(f"    s_branch L_stamp")
            else:
                A("    s_endpgm")

    mainloop(False)
    A("L_v:")
    mainloop(True)
    if stamp:
        A("L_stamp:")
        A("    s_memrealtime s[64:65]")
        A("    s_getreg_b32 s66, hwreg(HW_REG_XCC_ID)")
        A("    s_getreg_b32 s67, hwreg(HW_REG_HW_ID)")
        A("    s_waitcnt lgkmcnt(0)")
        A(f"    s_mul_i32 s46, s2, {2*nw}")
        A("    s_add_u32 s46, s46, s36")
        A("    s_lshl_b32 s46, s46, 5")
        A("    v_mov_b32 v8, s60")
        A("    v_mov_b32 v9, s61")
        A("    v_mov_b32 v10, s62")
        A("    v_mov_b32 v11, s63")
        A("    v_mov_b32 v12, s64")
        A("    v_mov_b32 v13, s65")
        A("    v_mov_b32 v14, s66")
        A("    v_mov_b32 v15, s67")
        A("    v_mov_b32 v4, s46")
        A("    s_mov_b64 exec, 1")
        A("    global_store_dwordx4 v4, v[8:11], s[18:19]")
        A("    global_store_dwordx4 v4, v[12:15], s[18:19] offset:16")
    A("L_end:")
    A("    s_endpgm")
    A('.section .rodata,"a"')
    A(".p2align 6")
    A(f".amdhsa_kernel {NAME}_kernel")
    A(f"  .amdhsa_next_free_vgpr {total}")
    A("  .amdhsa_next_free_sgpr 72")
    A(f"  .amdhsa_accum_offset {acc_off}")
    A("  .amdhsa_group_segment_fixed_size 0")
    A("  .amdhsa_kernarg_size 64")
    A("  .amdhsa_user_sgpr_count 2")
    A("  .amdhsa_user_sgpr_kernarg_segment_ptr 1")
    A("  .amdhsa_system_sgpr_workgroup_id_x 1")
    A("  .amdhsa_float_denorm_mode_32 3")
    A(".end_amdhsa_kernel")
    return "\n".join(L) + "\n"


if __name__ == "__main__":
    out = sys.argv[1]
    kw = dict(a.split("=", 1) for a in sys.argv[2:])
    open(out, "w").write(gen(**kw))
```

```python
import sys
from math import gcd

NAME = "standalone__low_rank_proj_linformer__sampling"

HEADER = """; Kernarg layout for this problem (64 bytes, ptrs only, base s[0:1]):
"""


def gen(P=12, cache="nt", pcache="", stamp=0, lds=90000, local=0, hmap=0):
    P = int(P); stamp = int(stamp); lds = int(lds); local = int(local); hmap = int(hmap)
    L = []
    A = L.append
    U = P * 4 // gcd(P, 4)
    need_e = (P + 3) // 4 + 1
    while U // 4 < need_e:
        U *= 2
    NE = U // 4
    ST = 8
    RING = 40
    nv = RING + 8 * P
    TMP = nv
    nv += 24
    VT = nv
    if stamp:
        nv += 1
    acc_off = (nv + 3) // 4 * 4
    AQ = 32
    AP = 48
    na = AP + 4 * NE
    total = acc_off + na
    assert acc_off <= 256 and total <= 512, (acc_off, total)
    assert 2 * P + NE + 4 <= 63

    A(HEADER + f"; @launch grid=(256,1,1) block=(64,1,1) lds={lds}")
    A('.amdgcn_target "amdgcn-amd-amdhsa--gfx950"')
    A(".text")
    A(f".globl {NAME}_kernel")
    A(".p2align 8")
    A(f".type {NAME}_kernel,@function")
    A(f"{NAME}_kernel:")
    A("    s_load_dwordx8 s[4:11], s[0:1], 0     ; q k v e")
    A("    s_load_dwordx8 s[12:19], s[0:1], 32")
    if stamp:
        A("    s_memrealtime s[60:61]")
        A(f"    v_mov_b32 v{VT}, 0")
    A("    s_cmp_ge_u32 s2, 256")
    A("    s_cbranch_scc1 L_end")
    if hmap == 1:
        A("    s_and_b32 s3, s2, 7")
        A("    s_lshl_b32 s3, s3, 5")
        A("    s_lshr_b32 s43, s2, 3")
        A("    s_add_u32 s3, s3, s43")
    else:
        A("    s_mov_b32 s3, s2")
    A("    v_lshrrev_b32 v6, 4, v0             ; g")
    A("    v_and_b32 v7, 15, v0                ; c")
    A("    v_lshlrev_b32 v1, 11, v6")
    A("    v_lshl_add_u32 v1, v7, 4, v1")
    A("    v_lshlrev_b32 v2, 13, v7")
    A("    v_lshl_add_u32 v2, v6, 4, v2")
    A("    v_lshlrev_b32 v3, 8, v7")
    A("    v_lshl_add_u32 v3, v6, 6, v3        ; q voffset = c*256 + g*64")
    A("    s_lshl_b32 s43, s3, 20")
    A("    s_lshl_b32 s44, s3, 11")
    A("    s_mov_b32 s22, 0x100000")
    A("    s_mov_b32 s23, 0x20000")
    A("    s_mov_b32 s26, 0x20000")
    A("    s_mov_b32 s27, 0x20000")
    A("    s_mov_b32 s30, 2048")
    A("    s_mov_b32 s31, 0x20000")
    A("    s_mov_b32 s34, 2048")
    A("    s_mov_b32 s35, 0x20000")
    A("    s_mov_b32 s39, 0")
    A("    s_mov_b32 s40, 0")
    if local:
        A("    s_lshr_b32 s51, s2, 3")
        A("    s_lshl_b32 s51, s51, 2")
        A("    s_and_b32 s52, s2, 3")
        A("    s_add_u32 s51, s51, s52            ; pair")
        A("    s_lshl_b32 s43, s51, 21")
        A("    s_lshl_b32 s50, s51, 1")
        A("    s_and_b32 s52, s50, 0xfffffffc")
        A("    s_add_u32 s52, s52, 0x100000")
        A("    s_getreg_b32 s54, hwreg(HW_REG_XCC_ID)")
        A("    s_lshr_b32 s54, s54, 2")
        A("    s_and_b32 s50, s50, 3")
        A("    s_lshl_b32 s50, s50, 3")
        A("    s_mov_b32 s22, 0x200000")
    A("    s_waitcnt lgkmcnt(0)")
    if local:
        A("    s_load_dword s53, s[18:19], s52")
        A("    s_add_u32 s52, s52, 256")
        A("    s_load_dword s55, s[18:19], s52")
        A("    s_waitcnt lgkmcnt(0)")
        A("    s_lshr_b32 s53, s53, s50")
        A("    s_xor_b32 s53, s53, s54")
        A("    s_and_b32 s53, s53, 1              ; parity K")
        A("    s_lshr_b32 s55, s55, s50")
        A("    s_xor_b32 s55, s55, s54")
        A("    s_and_b32 s55, s55, 1              ; parity V")
        A("    s_lshl_b32 s39, s53, 13")
        A("    s_lshl_b32 s40, s53, 6")
    A("    s_add_u32 s20, s6, s43")
    A("    s_addc_u32 s21, s7, 0")
    A("    s_mov_b32 s24, s10")
    A("    s_mov_b32 s25, s11")

    cf = (" " + cache) if cache else ""
    pf = (" " + pcache) if pcache else ""
    dstep = 16384 if local else 8192
    estep = 128 if local else 64

    def issue(u, first=False):
        p = u % 4
        if p == 0:
            if not first:
                A(f"    s_add_u32 s39, s39, {dstep}")
                A(f"    s_add_u32 s40, s40, {estep}")
                if local:
                    A("    s_and_b32 s40, s40, 8191")
            r = AP + 4 * ((u // 4) % NE)
            A(f"    buffer_load_dwordx4 a[{r}:{r+3}], v2, s[24:27], s40 offen{pf}")
        r = RING + 8 * (u % P)
        for h in range(2):
            o = 512 * p + 256 * h
            off = f" offset:{o}" if o else ""
            A(f"    buffer_load_dwordx4 v[{r+4*h}:{r+4*h+3}], v1, s[20:23], s39 offen{off}{cf}")

    def nwait(s, extra=0):
        return 2 * (P - 1) + sum(1 for u in range(s + 1, s + P) if u % 4 == 0) + extra

    def perms(s):
        p = s % 4
        r = RING + 8 * (s % P)
        for i in range(8):
            sel = "s38" if (i & 1) else "s37"
            A(f"    v_perm_b32 v{ST+4*i+p}, v{r+4+(i>>1)}, v{r+(i>>1)}, {sel}")

    def mfmas(s, isv, zero=False):
        pa = AP + 4 * ((s // 4) % NE)
        for i in range(8):
            t = ST + 4 * i
            c = "0" if zero else f"a[{4*i}:{4*i+3}]"
            if isv:
                A(f"    v_mfma_f32_16x16x32_bf16 a[{4*i}:{4*i+3}], a[{pa}:{pa+3}], v[{t}:{t+3}], {c}")
            else:
                A(f"    v_mfma_f32_16x16x32_bf16 a[{4*i}:{4*i+3}], v[{t}:{t+3}], a[{pa}:{pa+3}], {c}")

    def step(s, isv, do_issue=True, extra=0, hook=None, wait=None):
        A(f"    s_waitcnt vmcnt({nwait(s, extra) if wait is None else wait})")
        perms(s)
        if hook:
            hook()
        if do_issue:
            issue(s + P)
        elif s % 4 == 3:
            A("    s_nop 1")
        if s % 4 == 3:
            mfmas(s, isv)

    for u in range(P):
        issue(u, first=(u == 0))
        if u == 0:
            A("    s_mov_b32 s37, 0x05040100")
            A("    s_mov_b32 s38, 0x07060302")
    for i in range(32):
        A(f"    v_accvgpr_write_b32 a{i}, 0")
    A("    s_add_u32 s28, s4, s44")
    A("    s_addc_u32 s29, s5, 0")
    A("    s_add_u32 s32, s14, s44")
    A("    s_addc_u32 s33, s15, 0")
    if stamp:
        A("    s_memrealtime s[68:69]")
        A(f"    s_waitcnt vmcnt({nwait(0)})")
        A("    s_memrealtime s[70:71]")
        A("    s_mov_b32 s74, 0")

    S = 512

    def trace():
        if stamp:
            A("    s_memrealtime s[72:73]")
            A("    s_waitcnt lgkmcnt(0)")
            A("    s_sub_u32 s72, s72, s60")
            A("    s_mov_b32 m0, s74")
            A("    s_add_u32 s74, s74, 1")
            A("    s_nop 4")
            A(f"    v_writelane_b32 v{VT}, s72, m0")

    def loop(tag, s0, nsteps, isv):
        s = s0
        while s % U and nsteps:
            step(s, isv); s += 1; nsteps -= 1
        it = nsteps // U
        if it:
            A(f"    s_mov_b32 s47, {it}")
            A(f"L_loop_{tag}:")
            for k in range(U):
                step(s + k, isv)
            if stamp:
                tr_every = max(1, 32 // U)
                if tr_every > 1:
                    A(f"    s_and_b32 s75, s47, {tr_every-1}")
                    A(f"    s_cbranch_scc1 L_notr_{tag}")
                trace()
                A(f"L_notr_{tag}:")
            A("    s_sub_u32 s47, s47, 1")
            A("    s_cmp_lg_u32 s47, 0")
            A(f"    s_cbranch_scc1 L_loop_{tag}")
            s += it * U; nsteps -= it * U
        while nsteps:
            step(s, isv); s += 1; nsteps -= 1
        return s

    s = loop("k", 0, S - P, False)
    A("    s_add_u32 s20, s8, s43")
    A("    s_addc_u32 s21, s9, 0")
    A("    s_mov_b32 s24, s12")
    A("    s_mov_b32 s25, s13")
    if local:
        A("    s_lshl_b32 s39, s55, 13")
        A("    s_lshl_b32 s40, s55, 6")
        A(f"    s_sub_u32 s39, s39, {dstep}")
        A(f"    s_sub_u32 s40, s40, {estep}")
    else:
        A(f"    s_mov_b32 s39, {-dstep & 0xffffffff}")
        A(f"    s_mov_b32 s40, {-estep & 0xffffffff}")
    for kk in range(4):
        r = AQ + 4 * kk
        off = f" offset:{16*kk}" if kk else ""
        A(f"    buffer_load_dwordx4 a[{r}:{r+3}], v3, s[28:31], 0 offen{off}")
    while s < S:
        step(s, False, extra=4)
        s += 1

    T = TMP
    A("    s_nop 7")
    for i in range(32):
        A(f"    v_accvgpr_read_b32 v{ST+i}, a{i}")
    for kk in range(4):
        for p in range(4):
            A(f"    v_cvt_pk_bf16_f32 v{T+4*kk+p}, v{ST+4*(2*p)+kk}, v{ST+4*(2*p+1)+kk}")
    for i in range(32):
        A(f"    v_accvgpr_write_b32 a{i}, 0")
    A(f"    s_waitcnt vmcnt({2*P + sum(1 for u in range(S, S+P) if u % 4 == 0)})")
    X = T + 16
    for kk in range(4):
        c = "0" if kk == 0 else f"v[{X}:{X+3}]"
        A(f"    v_mfma_f32_16x16x32_bf16 v[{X}:{X+3}], v[{T+4*kk}:{T+4*kk+3}], a[{AQ+4*kk}:{AQ+4*kk+3}], {c}")
    A("    s_mov_b32 s46, 0x3db504f3          ; 128^-0.5")
    A("    s_mov_b32 s48, 0x3fb8aa3b          ; log2(e)")
    A("    s_mov_b32 s49, 0xffff0000")
    A("    s_nop 5")
    a, b = X + 4, X + 5

    def rnd():
        A(f"    v_cvt_pk_bf16_f32 v{a}, v{X}, v{X+1}")
        A(f"    v_cvt_pk_bf16_f32 v{b}, v{X+2}, v{X+3}")
        A(f"    v_lshlrev_b32 v{X}, 16, v{a}")
        A(f"    v_and_b32 v{X+1}, s49, v{a}")
        A(f"    v_lshlrev_b32 v{X+2}, 16, v{b}")
        A(f"    v_and_b32 v{X+3}, s49, v{b}")
    rnd()
    for r in range(4):
        A(f"    v_mul_f32 v{X+r}, s46, v{X+r}")
    rnd()

    def xred(op):
        A(f"    v_mov_b32 v{b}, v{a}")
        A("    s_nop 1")
        A(f"    v_permlane16_swap_b32 v{a}, v{b}")
        A(f"    {op} v{a}, v{a}, v{b}")
        A(f"    v_mov_b32 v{b}, v{a}")
        A("    s_nop 1")
        A(f"    v_permlane32_swap_b32 v{a}, v{b}")
        A(f"    {op} v{a}, v{a}, v{b}")
    A(f"    v_max_f32 v{a}, v{X}, v{X+1}")
    A(f"    v_max3_f32 v{a}, v{X+2}, v{X+3}, v{a}")
    xred("v_max_f32")
    for r in range(4):
        A(f"    v_sub_f32 v{X+r}, v{X+r}, v{a}")
    for r in range(4):
        A(f"    v_mul_f32 v{X+r}, s48, v{X+r}")
    for r in range(4):
        A(f"    v_exp_f32 v{X+r}, v{X+r}")
    A("    s_nop 0")
    A(f"    v_add_f32 v{a}, v{X}, v{X+1}")
    A(f"    v_add_f32 v{b}, v{X+2}, v{X+3}")
    A(f"    v_add_f32 v{a}, v{a}, v{b}")
    xred("v_add_f32")
    A(f"    v_rcp_f32 v{a}, v{a}")
    A("    s_nop 0")
    for r in range(4):
        A(f"    v_mul_f32 v{X+r}, v{X+r}, v{a}")
    PR = X + 6
    A(f"    v_cvt_pk_bf16_f32 v{PR}, v{X}, v{X+1}")
    A(f"    v_cvt_pk_bf16_f32 v{PR+1}, v{X+2}, v{X+3}")
    A("    v_lshlrev_b32 v5, 10, v6")
    A("    v_lshl_add_u32 v5, v7, 4, v5")

    s = loop("v", S, S - P, True)
    left = 2 * S - s
    while s < 2 * S:
        w = 2 * (2 * S - 1 - s) + sum(1 for u in range(s + 1, 2 * S) if u % 4 == 0)
        step(s, True, do_issue=False, wait=w)
        s += 1
    if stamp:
        A("    s_memrealtime s[62:63]")
    for i in range(8):
        if i == 0:
            A("    s_nop 0")
        for r in range(4):
            A(f"    v_accvgpr_read_b32 v{ST+4*i+r}, a{4*i+r}")
        if i == 0:
            pass
    for i in range(8):
        A(f"    v_cvt_pk_bf16_f32 v{T+2*i}, v{ST+4*i}, v{ST+4*i+1}")
        A(f"    v_cvt_pk_bf16_f32 v{T+2*i+1}, v{ST+4*i+2}, v{ST+4*i+3}")
    A("    s_nop 1")
    for i in range(8):
        A(f"    v_mfma_f32_16x16x16_bf16 v[{ST+4*i}:{ST+4*i+3}], v[{PR}:{PR+1}], v[{T+2*i}:{T+2*i+1}], 0")
    A("    s_nop 7")
    for r in range(4):
        for p in range(4):
            A(f"    v_cvt_pk_bf16_f32 v{RING+4*r+p}, v{ST+4*(2*p)+r}, v{ST+4*(2*p+1)+r}")
        off = f" offset:{256*r}" if r else ""
        A(f"    buffer_store_dwordx4 v[{RING+4*r}:{RING+4*r+3}], v5, s[32:35], 0 offen{off}")
    if stamp:
        A("    s_waitcnt vmcnt(0)")
        A("    s_memrealtime s[64:65]")
        A("    s_getreg_b32 s66, hwreg(HW_REG_XCC_ID)")
        A("    s_getreg_b32 s67, hwreg(HW_REG_HW_ID)")
        A("    s_waitcnt lgkmcnt(0)")
        A("    s_lshl_b32 s46, s2, 6")
        for i in range(12):
            A(f"    v_mov_b32 v{8+i}, s{60+i}")
        A("    v_mov_b32 v4, s46")
        A("    s_lshl_b32 s47, s46, 2")
        A("    s_add_u32 s47, s47, 0x200000")
        A("    v_lshl_add_u32 v5, v0, 2, s47")
        A(f"    global_store_dword v5, v{VT}, s[18:19]")
        A("    s_mov_b64 exec, 1")
        A("    global_store_dwordx4 v4, v[8:11], s[18:19]")
        A("    global_store_dwordx4 v4, v[12:15], s[18:19] offset:16")
        A("    global_store_dwordx4 v4, v[16:19], s[18:19] offset:32")
    A("L_end:")
    A("    s_endpgm")
    A('.section .rodata,"a"')
    A(".p2align 6")
    A(f".amdhsa_kernel {NAME}_kernel")
    A(f"  .amdhsa_next_free_vgpr {total}")
    A("  .amdhsa_next_free_sgpr 80")
    A(f"  .amdhsa_accum_offset {acc_off}")
    A("  .amdhsa_group_segment_fixed_size 0")
    A("  .amdhsa_kernarg_size 64")
    A("  .amdhsa_user_sgpr_count 2")
    A("  .amdhsa_user_sgpr_kernarg_segment_ptr 1")
    A("  .amdhsa_system_sgpr_workgroup_id_x 1")
    A("  .amdhsa_float_denorm_mode_32 3")
    A(".end_amdhsa_kernel")
    return "\n".join(L) + "\n"


if __name__ == "__main__":
    out = sys.argv[1]
    kw = dict(a.split("=", 1) for a in sys.argv[2:])
    open(out, "w").write(gen(**kw))
```

```python
import sys
from math import gcd

NAME = "standalone__low_rank_proj_linformer__sampling"

HEADER = """; Kernarg layout for this problem (64 bytes, ptrs only, base s[0:1]):
"""


def gen(P=12, cache="nt", pcache="", stamp=0, lds=90000, local=0, hmap=0, spin=0):
    P = int(P); stamp = int(stamp); lds = int(lds); local = int(local); hmap = int(hmap); spin = int(spin)
    L = []
    A = L.append
    U = P * 4 // gcd(P, 4)
    need_e = (P + 3) // 4 + 1
    while U // 4 < need_e:
        U *= 2
    NE = U // 4
    ST = 8
    RING = 40
    nv = RING + 8 * P
    TMP = nv
    nv += 24
    VT = nv
    if stamp:
        nv += 1
    acc_off = (nv + 3) // 4 * 4
    AQ = 32
    AP = 48
    na = AP + 4 * NE
    total = acc_off + na
    assert acc_off <= 256 and total <= 512, (acc_off, total)
    assert 2 * P + NE + 4 <= 63

    A(HEADER + f"; @launch grid=(256,1,1) block=(64,1,1) lds={lds}")
    A('.amdgcn_target "amdgcn-amd-amdhsa--gfx950"')
    A(".text")
    A(f".globl {NAME}_kernel")
    A(".p2align 8")
    A(f".type {NAME}_kernel,@function")
    A(f"{NAME}_kernel:")
    A("    s_load_dwordx8 s[4:11], s[0:1], 0     ; q k v e")
    A("    s_load_dwordx8 s[12:19], s[0:1], 32")
    if stamp:
        A("    s_memrealtime s[60:61]")
        A(f"    v_mov_b32 v{VT}, 0")
    if spin:
        A("    s_memrealtime s[76:77]")
    A("    s_cmp_ge_u32 s2, 256")
    A("    s_cbranch_scc1 L_end")
    if hmap == 1:
        A("    s_and_b32 s3, s2, 7")
        A("    s_lshl_b32 s3, s3, 5")
        A("    s_lshr_b32 s43, s2, 3")
        A("    s_add_u32 s3, s3, s43")
    else:
        A("    s_mov_b32 s3, s2")
    A("    v_lshrrev_b32 v6, 4, v0             ; g")
    A("    v_and_b32 v7, 15, v0                ; c")
    A("    v_lshlrev_b32 v1, 11, v6")
    A("    v_lshl_add_u32 v1, v7, 4, v1")
    A("    v_lshlrev_b32 v2, 13, v7")
    A("    v_lshl_add_u32 v2, v6, 4, v2")
    A("    v_lshlrev_b32 v3, 8, v7")
    A("    v_lshl_add_u32 v3, v6, 6, v3        ; q voffset = c*256 + g*64")
    A("    s_lshl_b32 s43, s3, 20")
    A("    s_lshl_b32 s44, s3, 11")
    A("    s_mov_b32 s22, 0x100000")
    A("    s_mov_b32 s23, 0x20000")
    A("    s_mov_b32 s26, 0x20000")
    A("    s_mov_b32 s27, 0x20000")
    A("    s_mov_b32 s30, 2048")
    A("    s_mov_b32 s31, 0x20000")
    A("    s_mov_b32 s34, 2048")
    A("    s_mov_b32 s35, 0x20000")
    A("    s_mov_b32 s39, 0")
    A("    s_mov_b32 s40, 0")
    if local:
        A("    s_lshr_b32 s51, s2, 3")
        A("    s_lshl_b32 s51, s51, 2")
        A("    s_and_b32 s52, s2, 3")
        A("    s_add_u32 s51, s51, s52            ; pair")
        A("    s_lshl_b32 s43, s51, 21")
        A("    s_lshl_b32 s50, s51, 1")
        A("    s_and_b32 s52, s50, 0xfffffffc")
        A("    s_add_u32 s52, s52, 0x100000")
        A("    s_getreg_b32 s54, hwreg(HW_REG_XCC_ID)")
        A("    s_lshr_b32 s54, s54, 2")
        A("    s_and_b32 s50, s50, 3")
        A("    s_lshl_b32 s50, s50, 3")
        A("    s_mov_b32 s22, 0x200000")
    A("    s_waitcnt lgkmcnt(0)")
    if local:
        A("    s_load_dword s53, s[18:19], s52")
        A("    s_add_u32 s52, s52, 256")
        A("    s_load_dword s55, s[18:19], s52")
        A("    s_waitcnt lgkmcnt(0)")
        A("    s_lshr_b32 s53, s53, s50")
        A("    s_xor_b32 s53, s53, s54")
        A("    s_and_b32 s53, s53, 1              ; parity K")
        A("    s_lshr_b32 s55, s55, s50")
        A("    s_xor_b32 s55, s55, s54")
        A("    s_and_b32 s55, s55, 1              ; parity V")
        A("    s_lshl_b32 s39, s53, 13")
        A("    s_lshl_b32 s40, s53, 6")
    A("    s_add_u32 s20, s6, s43")
    A("    s_addc_u32 s21, s7, 0")
    A("    s_mov_b32 s24, s10")
    A("    s_mov_b32 s25, s11")

    cf = (" " + cache) if cache else ""
    pf = (" " + pcache) if pcache else ""
    dstep = 16384 if local else 8192
    estep = 128 if local else 64

    def issue(u, first=False):
        p = u % 4
        if p == 0:
            if not first:
                A(f"    s_add_u32 s39, s39, {dstep}")
                A(f"    s_add_u32 s40, s40, {estep}")
                if local:
                    A("    s_and_b32 s40, s40, 8191")
            r = AP + 4 * ((u // 4) % NE)
            A(f"    buffer_load_dwordx4 a[{r}:{r+3}], v2, s[24:27], s40 offen{pf}")
        r = RING + 8 * (u % P)
        for h in range(2):
            o = 512 * p + 256 * h
            off = f" offset:{o}" if o else ""
            A(f"    buffer_load_dwordx4 v[{r+4*h}:{r+4*h+3}], v1, s[20:23], s39 offen{off}{cf}")

    def nwait(s, extra=0):
        return 2 * (P - 1) + sum(1 for u in range(s + 1, s + P) if u % 4 == 0) + extra

    def perms(s):
        p = s % 4
        r = RING + 8 * (s % P)
        for i in range(8):
            sel = "s38" if (i & 1) else "s37"
            A(f"    v_perm_b32 v{ST+4*i+p}, v{r+4+(i>>1)}, v{r+(i>>1)}, {sel}")

    def mfmas(s, isv, zero=False):
        pa = AP + 4 * ((s // 4) % NE)
        for i in range(8):
            t = ST + 4 * i
            c = "0" if zero else f"a[{4*i}:{4*i+3}]"
            if isv:
                A(f"    v_mfma_f32_16x16x32_bf16 a[{4*i}:{4*i+3}], a[{pa}:{pa+3}], v[{t}:{t+3}], {c}")
            else:
                A(f"    v_mfma_f32_16x16x32_bf16 a[{4*i}:{4*i+3}], v[{t}:{t+3}], a[{pa}:{pa+3}], {c}")

    def step(s, isv, do_issue=True, extra=0, hook=None, wait=None):
        A(f"    s_waitcnt vmcnt({nwait(s, extra) if wait is None else wait})")
        perms(s)
        if hook:
            hook()
        if do_issue:
            issue(s + P)
        elif s % 4 == 3:
            A("    s_nop 1")
        if s % 4 == 3:
            mfmas(s, isv)

    for u in range(P):
        issue(u, first=(u == 0))
        if u == 0:
            A("    s_mov_b32 s37, 0x05040100")
            A("    s_mov_b32 s38, 0x07060302")
    for i in range(32):
        A(f"    v_accvgpr_write_b32 a{i}, 0")
    A("    s_add_u32 s28, s4, s44")
    A("    s_addc_u32 s29, s5, 0")
    A("    s_add_u32 s32, s14, s44")
    A("    s_addc_u32 s33, s15, 0")
    if stamp:
        A("    s_memrealtime s[68:69]")
        A(f"    s_waitcnt vmcnt({nwait(0)})")
        A("    s_memrealtime s[70:71]")
        A("    s_mov_b32 s74, 0")

    S = 512

    def trace():
        if stamp:
            A("    s_memrealtime s[72:73]")
            A("    s_waitcnt lgkmcnt(0)")
            A("    s_sub_u32 s72, s72, s60")
            A("    s_mov_b32 m0, s74")
            A("    s_add_u32 s74, s74, 1")
            A("    s_nop 4")
            A(f"    v_writelane_b32 v{VT}, s72, m0")

    def loop(tag, s0, nsteps, isv):
        s = s0
        while s % U and nsteps:
            step(s, isv); s += 1; nsteps -= 1
        it = nsteps // U
        if it:
            A(f"    s_mov_b32 s47, {it}")
            A(f"L_loop_{tag}:")
            for k in range(U):
                step(s + k, isv)
            if stamp:
                tr_every = max(1, 32 // U)
                if tr_every > 1:
                    A(f"    s_and_b32 s75, s47, {tr_every-1}")
                    A(f"    s_cbranch_scc1 L_notr_{tag}")
                trace()
                A(f"L_notr_{tag}:")
            A("    s_sub_u32 s47, s47, 1")
            A("    s_cmp_lg_u32 s47, 0")
            A(f"    s_cbranch_scc1 L_loop_{tag}")
            s += it * U; nsteps -= it * U
        while nsteps:
            step(s, isv); s += 1; nsteps -= 1
        return s

    s = loop("k", 0, S - P, False)
    A("    s_add_u32 s20, s8, s43")
    A("    s_addc_u32 s21, s9, 0")
    A("    s_mov_b32 s24, s12")
    A("    s_mov_b32 s25, s13")
    if local:
        A("    s_lshl_b32 s39, s55, 13")
        A("    s_lshl_b32 s40, s55, 6")
        A(f"    s_sub_u32 s39, s39, {dstep}")
        A(f"    s_sub_u32 s40, s40, {estep}")
    else:
        A(f"    s_mov_b32 s39, {-dstep & 0xffffffff}")
        A(f"    s_mov_b32 s40, {-estep & 0xffffffff}")
    for kk in range(4):
        r = AQ + 4 * kk
        off = f" offset:{16*kk}" if kk else ""
        A(f"    buffer_load_dwordx4 a[{r}:{r+3}], v3, s[28:31], 0 offen{off}")
    while s < S:
        step(s, False, extra=4)
        s += 1

    T = TMP
    A("    s_nop 7")
    for i in range(32):
        A(f"    v_accvgpr_read_b32 v{ST+i}, a{i}")
    for kk in range(4):
        for p in range(4):
            A(f"    v_cvt_pk_bf16_f32 v{T+4*kk+p}, v{ST+4*(2*p)+kk}, v{ST+4*(2*p+1)+kk}")
    for i in range(32):
        A(f"    v_accvgpr_write_b32 a{i}, 0")
    A(f"    s_waitcnt vmcnt({2*P + sum(1 for u in range(S, S+P) if u % 4 == 0)})")
    X = T + 16
    for kk in range(4):
        c = "0" if kk == 0 else f"v[{X}:{X+3}]"
        A(f"    v_mfma_f32_16x16x32_bf16 v[{X}:{X+3}], v[{T+4*kk}:{T+4*kk+3}], a[{AQ+4*kk}:{AQ+4*kk+3}], {c}")
    A("    s_mov_b32 s46, 0x3db504f3          ; 128^-0.5")
    A("    s_mov_b32 s48, 0x3fb8aa3b          ; log2(e)")
    A("    s_mov_b32 s49, 0xffff0000")
    A("    s_nop 5")
    a, b = X + 4, X + 5

    def rnd():
        A(f"    v_cvt_pk_bf16_f32 v{a}, v{X}, v{X+1}")
        A(f"    v_cvt_pk_bf16_f32 v{b}, v{X+2}, v{X+3}")
        A(f"    v_lshlrev_b32 v{X}, 16, v{a}")
        A(f"    v_and_b32 v{X+1}, s49, v{a}")
        A(f"    v_lshlrev_b32 v{X+2}, 16, v{b}")
        A(f"    v_and_b32 v{X+3}, s49, v{b}")
    rnd()
    for r in range(4):
        A(f"    v_mul_f32 v{X+r}, s46, v{X+r}")
    rnd()

    def xred(op):
        A(f"    v_mov_b32 v{b}, v{a}")
        A("    s_nop 1")
        A(f"    v_permlane16_swap_b32 v{a}, v{b}")
        A(f"    {op} v{a}, v{a}, v{b}")
        A(f"    v_mov_b32 v{b}, v{a}")
        A("    s_nop 1")
        A(f"    v_permlane32_swap_b32 v{a}, v{b}")
        A(f"    {op} v{a}, v{a}, v{b}")
    A(f"    v_max_f32 v{a}, v{X}, v{X+1}")
    A(f"    v_max3_f32 v{a}, v{X+2}, v{X+3}, v{a}")
    xred("v_max_f32")
    for r in range(4):
        A(f"    v_sub_f32 v{X+r}, v{X+r}, v{a}")
    for r in range(4):
        A(f"    v_mul_f32 v{X+r}, s48, v{X+r}")
    for r in range(4):
        A(f"    v_exp_f32 v{X+r}, v{X+r}")
    A("    s_nop 0")
    A(f"    v_add_f32 v{a}, v{X}, v{X+1}")
    A(f"    v_add_f32 v{b}, v{X+2}, v{X+3}")
    A(f"    v_add_f32 v{a}, v{a}, v{b}")
    xred("v_add_f32")
    A(f"    v_rcp_f32 v{a}, v{a}")
    A("    s_nop 0")
    for r in range(4):
        A(f"    v_mul_f32 v{X+r}, v{X+r}, v{a}")
    PR = X + 6
    A(f"    v_cvt_pk_bf16_f32 v{PR}, v{X}, v{X+1}")
    A(f"    v_cvt_pk_bf16_f32 v{PR+1}, v{X+2}, v{X+3}")
    A("    v_lshlrev_b32 v5, 10, v6")
    A("    v_lshl_add_u32 v5, v7, 4, v5")

    s = loop("v", S, S - P, True)
    left = 2 * S - s
    while s < 2 * S:
        w = 2 * (2 * S - 1 - s) + sum(1 for u in range(s + 1, 2 * S) if u % 4 == 0)
        step(s, True, do_issue=False, wait=w)
        s += 1
    if stamp:
        A("    s_memrealtime s[62:63]")
    for i in range(8):
        if i == 0:
            A("    s_nop 0")
        for r in range(4):
            A(f"    v_accvgpr_read_b32 v{ST+4*i+r}, a{4*i+r}")
        if i == 0:
            pass
    for i in range(8):
        A(f"    v_cvt_pk_bf16_f32 v{T+2*i}, v{ST+4*i}, v{ST+4*i+1}")
        A(f"    v_cvt_pk_bf16_f32 v{T+2*i+1}, v{ST+4*i+2}, v{ST+4*i+3}")
    A("    s_nop 1")
    for i in range(8):
        A(f"    v_mfma_f32_16x16x16_bf16 v[{ST+4*i}:{ST+4*i+3}], v[{PR}:{PR+1}], v[{T+2*i}:{T+2*i+1}], 0")
    A("    s_nop 7")
    for r in range(4):
        for p in range(4):
            A(f"    v_cvt_pk_bf16_f32 v{RING+4*r+p}, v{ST+4*(2*p)+r}, v{ST+4*(2*p+1)+r}")
        off = f" offset:{256*r}" if r else ""
        A(f"    buffer_store_dwordx4 v[{RING+4*r}:{RING+4*r+3}], v5, s[32:35], 0 offen{off}")
    if stamp:
        A("    s_waitcnt vmcnt(0)")
        A("    s_memrealtime s[64:65]")
        A("    s_getreg_b32 s66, hwreg(HW_REG_XCC_ID)")
        A("    s_getreg_b32 s67, hwreg(HW_REG_HW_ID)")
        A("    s_waitcnt lgkmcnt(0)")
        A("    s_lshl_b32 s46, s2, 6")
        for i in range(12):
            A(f"    v_mov_b32 v{8+i}, s{60+i}")
        A("    v_mov_b32 v4, s46")
        A("    s_lshl_b32 s47, s46, 2")
        A("    s_add_u32 s47, s47, 0x200000")
        A("    v_lshl_add_u32 v5, v0, 2, s47")
        A(f"    global_store_dword v5, v{VT}, s[18:19]")
        A("    s_mov_b64 exec, 1")
        A("    global_store_dwordx4 v4, v[8:11], s[18:19]")
        A("    global_store_dwordx4 v4, v[12:15], s[18:19] offset:16")
        A("    global_store_dwordx4 v4, v[16:19], s[18:19] offset:32")
    if spin:
        A("    s_waitcnt vmcnt(0)")
        A("    s_memrealtime s[72:73]")
        A("    s_waitcnt lgkmcnt(0)")
        A("    s_sub_u32 s72, s72, s76")
        A("    v_mov_b32 v4, 0")
        A("    v_mov_b32 v5, s72")
        A("    s_mov_b64 exec, 1")
        A("    global_atomic_umax v4, v5, s[16:17]")
        A("L_spin:")
        A("    s_memrealtime s[72:73]")
        A("    s_waitcnt lgkmcnt(0)")
        A("    s_sub_u32 s72, s72, s76")
        A(f"    s_cmp_lt_u32 s72, {spin}")
        A("    s_cbranch_scc1 L_spin")
    A("L_end:")
    A("    s_endpgm")
    A('.section .rodata,"a"')
    A(".p2align 6")
    A(f".amdhsa_kernel {NAME}_kernel")
    A(f"  .amdhsa_next_free_vgpr {total}")
    A("  .amdhsa_next_free_sgpr 80")
    A(f"  .amdhsa_accum_offset {acc_off}")
    A("  .amdhsa_group_segment_fixed_size 0")
    A("  .amdhsa_kernarg_size 64")
    A("  .amdhsa_user_sgpr_count 2")
    A("  .amdhsa_user_sgpr_kernarg_segment_ptr 1")
    A("  .amdhsa_system_sgpr_workgroup_id_x 1")
    A("  .amdhsa_float_denorm_mode_32 3")
    A(".end_amdhsa_kernel")
    return "\n".join(L) + "\n"


if __name__ == "__main__":
    out = sys.argv[1]
    kw = dict(a.split("=", 1) for a in sys.argv[2:])
    open(out, "w").write(gen(**kw))
```

```python
import sys

NAME = "standalone__low_rank_proj_linformer__sampling"

HEADER = """; Kernarg layout for this problem (64 bytes, ptrs only, base s[0:1]):
"""


def gen(D=11, cache="nt", pcache="", stamp=0, lds=90000, local=0, xr="", walk=1, touch=1, spin=0, xrv=None):
    D = int(D); stamp = int(stamp); lds = int(lds); local = int(local); walk = int(walk); touch = int(touch)
    spin = int(spin)
    L = []
    A = L.append
    U = 16
    assert D <= 15
    ST = 8
    VA = 40
    RING = 72
    nv = RING + 8 * U
    VT = nv
    if stamp:
        nv += 1
    acc_off = (nv + 3) // 4 * 4
    AK = 0
    AP = 32
    total = acc_off + 48
    LDS_K = 0
    LDS_P = 8192
    LDS_SCR = 9216
    lds = max(lds, LDS_SCR + 9216)

    A(HEADER + f"; @launch grid=(256,1,1) block=(128,1,1) lds={lds}")
    A('.amdgcn_target "amdgcn-amd-amdhsa--gfx950"')
    A(".text")
    A(f".globl {NAME}_kernel")
    A(".p2align 8")
    A(f".type {NAME}_kernel,@function")
    A(f"{NAME}_kernel:")
    A("    s_load_dwordx16 s[4:19], s[0:1], 0")
    if stamp or spin:
        A("    s_memrealtime s[60:61]")
    if stamp:
        A(f"    v_mov_b32 v{VT}, 0")
    A("    s_cmp_ge_u32 s2, 256")
    A("    s_cbranch_scc1 L_end")
    A("    v_readfirstlane_b32 s36, v0")
    A("    v_and_b32 v0, 63, v0                ; lane")
    A("    v_lshrrev_b32 v6, 4, v0             ; g")
    A("    v_and_b32 v7, 15, v0                ; c")
    A("    v_lshlrev_b32 v1, 11, v6")
    A("    v_lshl_add_u32 v1, v7, 4, v1")
    A("    v_lshlrev_b32 v2, 13, v7")
    A("    v_lshl_add_u32 v2, v6, 4, v2")
    if local:
        A("    s_lshr_b32 s51, s2, 3")
        A("    s_lshl_b32 s51, s51, 2")
        A("    s_and_b32 s52, s2, 3")
        A("    s_add_u32 s51, s51, s52            ; pair")
        A("    s_lshl_b32 s43, s51, 21")
        A("    s_lshl_b32 s50, s51, 1")
        A("    s_and_b32 s52, s50, 0xfffffffc")
        A("    s_add_u32 s52, s52, 0x100000")
        A("    s_getreg_b32 s54, hwreg(HW_REG_XCC_ID)")
        A("    s_lshr_b32 s54, s54, 2")
        A("    s_and_b32 s50, s50, 3")
        A("    s_lshl_b32 s50, s50, 3")
    else:
        A("    s_lshl_b32 s43, s2, 20")
    REG = 0x200000 if local else 0x100000
    A("    s_cmp_eq_u32 s36, 0")
    A(f"    s_cselect_b32 s22, {2*REG:#x}, 0")
    A("    s_mov_b32 s23, 0x20000")
    A("    s_cselect_b32 s26, 0x20000, 0")
    A("    s_mov_b32 s27, 0x20000")
    A("    s_cselect_b32 s47, 32, 1")

    def mask(dst, spec):
        A(f"    s_mov_b32 {dst}, 0")
        k = 0
        while k < len(spec):
            if spec[k] == '.':
                k += 1
                continue
            n = 1
            while k + n < len(spec) and spec[k + n] != '.' and int(spec[k + n]) == int(spec[k]) + n:
                n += 1
            A(f"    s_bfe_u32 s58, s2, {int(spec[k]) | (n << 16):#x}")
            A(f"    s_lshl_b32 s58, s58, {13+k}")
            A(f"    s_or_b32 {dst}, {dst}, s58")
            k += n
    mask("s56", xr)
    A("    s_mov_b32 s57, 0")
    A("    s_mov_b32 s39, 0")
    A("    s_waitcnt lgkmcnt(0)")
    if local:
        A("    s_load_dword s53, s[18:19], s52")
        A("    s_add_u32 s52, s52, 256")
        A("    s_load_dword s55, s[18:19], s52")
        A("    s_waitcnt lgkmcnt(0)")
        A("    s_lshr_b32 s53, s53, s50")
        A("    s_xor_b32 s53, s53, s54")
        A("    s_and_b32 s53, s53, 1              ; parity K")
        A("    s_lshr_b32 s55, s55, s50")
        A("    s_xor_b32 s55, s55, s54")
        A("    s_and_b32 s55, s55, 1              ; parity V")
        A("    s_lshl_b32 s53, s53, 13")
        A("    s_lshl_b32 s55, s55, 13")
        A("    s_xor_b32 s55, s55, s56            ; mask V")
        A("    s_xor_b32 s53, s53, s56            ; mask K")
        A("    s_mov_b32 s56, s53")
    A("    s_add_u32 s20, s6, s43")
    A("    s_addc_u32 s21, s7, 0")
    A("    s_mov_b64 s[24:25], s[10:11]")
    if walk:
        A("    s_cmp_lg_u32 s36, 0")
        A("    s_cbranch_scc1 L_setup")

    cf = (" " + cache) if cache else ""
    pf = (" " + pcache) if pcache else ""
    dstep = 16384 if local else 8192

    def issue(u, first=False, sw=False):
        p = u % 4
        if p == 0:
            if not first:
                A(f"    s_add_u32 s57, s57, {dstep}")
            if sw:
                A(f"    s_cmp_ge_u32 s57, {REG:#x}")
                A("    s_cselect_b64 s[20:21], s[44:45], s[20:21]")
                A("    s_cselect_b64 s[24:25], s[12:13], s[24:25]")
                if local:
                    A("    s_cselect_b32 s56, s55, s56")
            A("    s_xor_b32 s39, s57, s56")
        if p == 3:
            A("    s_bfe_u32 s40, s39, 0xd0007         ; (off >> 7) & 8191")
            r = AP + 4 * ((u // 4) % 4)
            A(f"    buffer_load_dwordx4 a[{r}:{r+3}], v2, s[24:27], s40 offen{pf}")
        r = RING + 8 * (u % U)
        for h in range(2):
            o = 512 * p + 256 * h
            off = f" offset:{o}" if o else ""
            A(f"    buffer_load_dwordx4 v[{r+4*h}:{r+4*h+3}], v1, s[20:23], s39 offen{off}{cf}")

    def nwait(s):
        return 2 * (D - 1) + sum(1 for u in range(s + 1, s + D) if u % 4 == 3)

    def step(s, isv):
        A(f"    s_waitcnt vmcnt({nwait(s)})")
        p = s % 4
        r = RING + 8 * (s % U)
        issue(s + D, sw=not isv)
        for i in range(8):
            sel = "s38" if (i & 1) else "s37"
            A(f"    v_perm_b32 v{ST+4*i+p}, v{r+4+(i>>1)}, v{r+(i>>1)}, {sel}")
        if p == 3:
            pa = AP + 4 * ((s // 4) % 4)
            for i in range(8):
                t = ST + 4 * i
                if isv:
                    c = VA + 4 * i
                    A(f"    v_mfma_f32_16x16x32_bf16 v[{c}:{c+3}], a[{pa}:{pa+3}], v[{t}:{t+3}], v[{c}:{c+3}]")
                else:
                    c = AK + 4 * i
                    A(f"    v_mfma_f32_16x16x32_bf16 a[{c}:{c+3}], v[{t}:{t+3}], a[{pa}:{pa+3}], a[{c}:{c+3}]")

    def trace(tag):
        if stamp:
            A("    s_and_b32 s75, s47, 1")
            A(f"    s_cbranch_scc1 L_notr_{tag}")
            A("    s_memrealtime s[72:73]")
            A("    s_waitcnt lgkmcnt(0)")
            A("    s_sub_u32 s72, s72, s60")
            A("    s_mov_b32 m0, s74")
            A("    s_add_u32 s74, s74, 1")
            A("    s_nop 4")
            A(f"    v_writelane_b32 v{VT}, s72, m0")
            A(f"L_notr_{tag}:")

    for u in range(D):
        issue(u, first=(u == 0))
    A("L_setup:")
    A("    s_mov_b32 s37, 0x05040100")
    A("    s_mov_b32 s38, 0x07060302")
    A("    s_add_u32 s44, s8, s43")
    A("    s_addc_u32 s45, s9, 0")
    A(f"    s_sub_u32 s44, s44, {REG:#x}")
    A("    s_subb_u32 s45, s45, 0")
    A("    s_lshl_b32 s46, s2, 11")
    A("    s_add_u32 s32, s14, s46")
    A("    s_addc_u32 s33, s15, 0")
    A("    s_cmp_eq_u32 s36, 0")
    A("    s_cselect_b32 s34, 2048, 0")
    A("    s_mov_b32 s35, 0x20000")
    A(f"    s_cselect_b32 s41, 0, {LDS_SCR}")
    A("    s_cselect_b32 s42, 31, 1")
    A("    v_lshl_add_u32 v3, v0, 4, s41")
    A("    v_lshl_add_u32 v4, v0, 3, s41")
    A("    v_lshlrev_b32 v5, 10, v6")
    A("    v_lshl_add_u32 v5, v7, 4, v5")
    for i in range(32):
        A(f"    v_accvgpr_write_b32 a{AK+i}, 0")
    for i in range(0, 32, 2):
        A(f"    v_pk_mov_b32 v[{VA+i}:{VA+i+1}], 0, 0")
    if not walk:
        A("    s_cmp_lg_u32 s36, 0")
        A("    s_cbranch_scc1 L_helper")
    if stamp:
        A("    s_memrealtime s[68:69]")
        A(f"    s_waitcnt vmcnt({nwait(0)})")
        A("    s_memrealtime s[70:71]")
        A("    s_mov_b32 s74, 0")
    A("L_loop_k:")
    for s in range(U):
        step(s, False)
    trace("k")
    A("    s_sub_u32 s47, s47, 1")
    A("    s_cmp_lg_u32 s47, 0")
    A("    s_cbranch_scc1 L_loop_k")
    for i in range(8):
        A(f"    ds_write_b128 v3, a[{AK+4*i}:{AK+4*i+3}] offset:{LDS_K+1024*i}")
    A("    s_mov_b32 s47, 1")
    A("L_loop_v:")
    for s in range(U):
        step(s, True)
    trace("v")
    A("    s_sub_u32 s47, s47, 1")
    A("    s_cmp_lg_u32 s47, 0")
    A("    s_cbranch_scc1 L_loop_v")
    A("    s_cmp_lg_u32 s36, 0")
    A("    s_cbranch_scc1 L_nobar")
    A("    s_waitcnt lgkmcnt(0)")
    A("    s_barrier")
    A("L_nobar:")
    A("    s_mov_b32 s47, s42")
    A("    s_mov_b32 s42, 0")
    A("    s_cmp_lg_u32 s47, 0")
    A("    s_cbranch_scc1 L_loop_v")
    if stamp:
        A("    s_memrealtime s[62:63]")
        A("    s_waitcnt lgkmcnt(0)")
    PR = ST + 16
    A(f"    ds_read_b64 v[{PR}:{PR+1}], v4 offset:{LDS_P}")
    for i in range(8):
        A(f"    v_cvt_pk_bf16_f32 v{ST+2*i}, v{VA+4*i}, v{VA+4*i+1}")
        A(f"    v_cvt_pk_bf16_f32 v{ST+2*i+1}, v{VA+4*i+2}, v{VA+4*i+3}")
    A("    s_waitcnt lgkmcnt(0)")
    for i in range(8):
        A(f"    v_mfma_f32_16x16x16_bf16 v[{VA+4*i}:{VA+4*i+3}], v[{PR}:{PR+1}], v[{ST+2*i}:{ST+2*i+1}], 0")
    A("    s_nop 1")
    for p in range(4):
        for r in range(4):
            A(f"    v_cvt_pk_bf16_f32 v{ST+4*r+p}, v{VA+4*(2*p)+r}, v{VA+4*(2*p+1)+r}")
    for r in range(4):
        off = f" offset:{256*r}" if r else ""
        A(f"    buffer_store_dwordx4 v[{ST+4*r}:{ST+4*r+3}], v5, s[32:35], 0 offen{off}")
    A("    s_cmp_lg_u32 s36, 0")
    A("    s_cbranch_scc1 L_helper")
    if stamp:
        A("    s_waitcnt vmcnt(0)")
        A("    s_memrealtime s[64:65]")
        A("    s_getreg_b32 s66, hwreg(HW_REG_XCC_ID)")
        A("    s_getreg_b32 s67, hwreg(HW_REG_HW_ID)")
        A("    s_waitcnt lgkmcnt(0)")
        A("    s_lshl_b32 s46, s2, 6")
        for i in range(12):
            A(f"    v_mov_b32 v{8+i}, s{60+i}")
        A("    v_mov_b32 v4, s46")
        A("    s_lshl_b32 s47, s46, 2")
        A("    s_add_u32 s47, s47, 0x200000")
        A("    v_lshl_add_u32 v5, v0, 2, s47")
        A(f"    global_store_dword v5, v{VT}, s[18:19]")
        A("    s_mov_b64 exec, 1")
        A("    global_store_dwordx4 v4, v[8:11], s[18:19]")
        A("    global_store_dwordx4 v4, v[12:15], s[18:19] offset:16")
        A("    global_store_dwordx4 v4, v[16:19], s[18:19] offset:32")
    if spin:
        A("    s_waitcnt vmcnt(0)")
        A("    s_memrealtime s[72:73]")
        A("    s_waitcnt lgkmcnt(0)")
        A("    s_sub_u32 s72, s72, s60")
        A("    v_mov_b32 v4, 0")
        A("    v_mov_b32 v5, s72")
        A("    s_mov_b64 exec, 1")
        A("    global_atomic_umax v4, v5, s[16:17]")
    A("L_end:")
    A("    s_endpgm")

    A("L_helper:")
    Q = RING
    KP = RING + 16
    KB = RING + 48
    X = RING + 64
    a, b = X + 4, X + 5
    A("    s_add_u32 s28, s4, s46")
    A("    s_addc_u32 s29, s5, 0")
    A("    s_mov_b32 s30, 2048")
    A("    s_mov_b32 s31, 0x20000")
    A("    v_lshlrev_b32 v3, 8, v7")
    A("    v_lshl_add_u32 v3, v6, 6, v3        ; q voffset = c*256 + g*64")
    A("    s_waitcnt vmcnt(0)")
    for kk in range(4):
        off = f" offset:{16*kk}" if kk else ""
        A(f"    buffer_load_dwordx4 v[{Q+4*kk}:{Q+4*kk+3}], v3, s[28:31], 0 offen{off}")
    if touch:
        A("    s_mov_b64 s[20:21], s[44:45]")
        A(f"    s_mov_b32 s22, {2*REG:#x}")
        A("    s_mov_b64 s[24:25], s[12:13]")
        A("    s_mov_b32 s26, 0x20000")
        A("    s_mov_b32 s34, 2048")
        A(f"    s_mov_b32 s39, {REG:#x}")
        A("    v_mov_b32 v8, 0")
        A(f"    buffer_load_dword v9, v8, s[20:23], s39 offen{cf}")
        A("    buffer_load_dword v10, v8, s[24:27], 0 offen")
        A("    buffer_load_dword v11, v8, s[32:35], 0 offen")
    A("    v_lshlrev_b32 v3, 4, v0")
    A("    v_lshlrev_b32 v4, 3, v0")
    A("    s_mov_b32 s46, 0x3db504f3          ; 128^-0.5")
    A("    s_mov_b32 s48, 0x3fb8aa3b          ; log2(e)")
    A("    s_mov_b32 s49, 0xffff0000")
    A("    s_waitcnt lgkmcnt(0)")
    A("    s_barrier")
    for i in range(8):
        A(f"    ds_read_b128 v[{KP+4*i}:{KP+4*i+3}], v3 offset:{LDS_K+1024*i}")
    A("    s_waitcnt vmcnt(0) lgkmcnt(0)")
    for kk in range(4):
        for p in range(4):
            A(f"    v_cvt_pk_bf16_f32 v{KB+4*kk+p}, v{KP+4*(2*p)+kk}, v{KP+4*(2*p+1)+kk}")
    A("    s_nop 1")
    for kk in range(4):
        c = "0" if kk == 0 else f"v[{X}:{X+3}]"
        A(f"    v_mfma_f32_16x16x32_bf16 v[{X}:{X+3}], v[{KB+4*kk}:{KB+4*kk+3}], v[{Q+4*kk}:{Q+4*kk+3}], {c}")
    A("    s_nop 7")

    def rnd():
        A(f"    v_cvt_pk_bf16_f32 v{a}, v{X}, v{X+1}")
        A(f"    v_cvt_pk_bf16_f32 v{b}, v{X+2}, v{X+3}")
        A(f"    v_lshlrev_b32 v{X}, 16, v{a}")
        A(f"    v_and_b32 v{X+1}, s49, v{a}")
        A(f"    v_lshlrev_b32 v{X+2}, 16, v{b}")
        A(f"    v_and_b32 v{X+3}, s49, v{b}")
    rnd()
    for r in range(4):
        A(f"    v_mul_f32 v{X+r}, s46, v{X+r}")
    rnd()

    def xred(op):
        A(f"    v_mov_b32 v{b}, v{a}")
        A("    s_nop 1")
        A(f"    v_permlane16_swap_b32 v{a}, v{b}")
        A(f"    {op} v{a}, v{a}, v{b}")
        A(f"    v_mov_b32 v{b}, v{a}")
        A("    s_nop 1")
        A(f"    v_permlane32_swap_b32 v{a}, v{b}")
        A(f"    {op} v{a}, v{a}, v{b}")
    A(f"    v_max_f32 v{a}, v{X}, v{X+1}")
    A(f"    v_max3_f32 v{a}, v{X+2}, v{X+3}, v{a}")
    xred("v_max_f32")
    for r in range(4):
        A(f"    v_sub_f32 v{X+r}, v{X+r}, v{a}")
    for r in range(4):
        A(f"    v_mul_f32 v{X+r}, s48, v{X+r}")
    for r in range(4):
        A(f"    v_exp_f32 v{X+r}, v{X+r}")
    A("    s_nop 0")
    A(f"    v_add_f32 v{a}, v{X}, v{X+1}")
    A(f"    v_add_f32 v{b}, v{X+2}, v{X+3}")
    A(f"    v_add_f32 v{a}, v{a}, v{b}")
    xred("v_add_f32")
    A(f"    v_rcp_f32 v{a}, v{a}")
    A("    s_nop 0")
    for r in range(4):
        A(f"    v_mul_f32 v{X+r}, v{X+r}, v{a}")
    A(f"    v_cvt_pk_bf16_f32 v{X+6}, v{X}, v{X+1}")
    A(f"    v_cvt_pk_bf16_f32 v{X+7}, v{X+2}, v{X+3}")
    A(f"    ds_write_b64 v4, v[{X+6}:{X+7}] offset:{LDS_P}")
    A("    s_waitcnt lgkmcnt(0)")
    A("    s_barrier")
    A("    s_endpgm")

    A('.section .rodata,"a"')
    A(".p2align 6")
    A(f".amdhsa_kernel {NAME}_kernel")
    A(f"  .amdhsa_next_free_vgpr {total}")
    A("  .amdhsa_next_free_sgpr 80")
    A(f"  .amdhsa_accum_offset {acc_off}")
    A("  .amdhsa_group_segment_fixed_size 0")
    A("  .amdhsa_kernarg_size 64")
    A("  .amdhsa_user_sgpr_count 2")
    A("  .amdhsa_user_sgpr_kernarg_segment_ptr 1")
    A("  .amdhsa_system_sgpr_workgroup_id_x 1")
    A("  .amdhsa_float_denorm_mode_32 3")
    A(".end_amdhsa_kernel")
    return "\n".join(L) + "\n"


if __name__ == "__main__":
    out = sys.argv[1]
    kw = dict(a.split("=", 1) for a in sys.argv[2:])
    open(out, "w").write(gen(**kw))
```

```python
import sys

NAME = "standalone__low_rank_proj_linformer__sampling"

HEADER = """; Kernarg layout for this problem (64 bytes, ptrs only, base s[0:1]):
"""


def gen(D=11, cache="nt", pcache="", stamp=0, lds=90000, local=0, xr="", walk=1, touch=1, spin=0, xrv=None, gpos="11,12", jx="", noe=0, bpos="", pref=0, btrace=0, race=0, rn=7, rwarm=0, hold=0, gap=0, gl=4, ghold=0, sgap=0, nh=1, vec=0, diag=0):
    D = int(D); stamp = int(stamp); lds = int(lds); local = int(local); walk = int(walk); touch = int(touch)
    spin = int(spin)
    g0, g1 = [int(x) for x in gpos.split(",")]
    skip = (1 << g0) | (1 << g1) | ((1 << 13) if int(local) else 0)
    if bpos:
        bp = [int(x) for x in bpos.split(",")]
    else:
        bp = [b for b in range(11, 21) if not (skip >> b) & 1][:2]
    skip |= (1 << bp[0]) | (1 << bp[1])
    jxb = [int(x) for x in jx.split(",")] if jx else None
    L = []
    A = L.append
    U = 16
    assert D <= 15
    ST = 8
    VA = 40
    RING = 72
    nv = RING + 8 * U
    VJ = nv
    nv += 8
    VT = nv
    if stamp:
        nv += 1
    acc_off = (nv + 3) // 4 * 4
    AK = 0
    AP = 32
    total = acc_off + 48
    LDS_K = 0
    LDS_P = 8192
    LDS_SCR = 9216
    lds = max(lds, LDS_SCR + 9216)

    A(HEADER + f"; @launch grid=(256,1,1) block=({64+64*int(nh)},1,1) lds={lds}")
    A('.amdgcn_target "amdgcn-amd-amdhsa--gfx950"')
    A(".text")
    A(f".globl {NAME}_kernel")
    A(".p2align 8")
    A(f".type {NAME}_kernel,@function")
    A(f"{NAME}_kernel:")
    A("    s_load_dwordx16 s[4:19], s[0:1], 0")
    if stamp or spin:
        A("    s_memrealtime s[60:61]")
    if stamp:
        A(f"    v_mov_b32 v{VT}, 0")
    A("    s_cmp_ge_u32 s2, 256")
    A("    s_cbranch_scc1 L_end")
    A("    v_readfirstlane_b32 s36, v0")
    A("    v_and_b32 v0, 63, v0                ; lane")
    A("    v_lshrrev_b32 v6, 4, v0             ; g")
    A("    v_and_b32 v7, 15, v0                ; c")
    A("    v_and_b32 v3, 1, v6")
    A("    v_lshrrev_b32 v4, 1, v6")
    A(f"    v_lshlrev_b32 v1, {g0}, v3")
    A(f"    v_lshl_add_u32 v1, v4, {g1}, v1")
    A("    v_lshrrev_b32 v2, 7, v1")
    A("    v_lshl_add_u32 v1, v7, 4, v1")
    A("    v_lshl_add_u32 v2, v7, 13, v2")
    if jxb:
        A(f"    v_lshlrev_b32 v3, {8+jxb[0]}, v3")
        A(f"    v_lshl_add_u32 v3, v4, {8+jxb[1]}, v3")
        for j in range(8):
            A(f"    v_xor_b32 v{VJ+j}, {256*j}, v3")
            A(f"    v_add_u32 v{VJ+j}, v{VJ+j}, v1")
    if local:
        A("    s_lshr_b32 s51, s2, 3")
        A("    s_lshl_b32 s51, s51, 2")
        A("    s_and_b32 s52, s2, 3")
        A("    s_add_u32 s51, s51, s52            ; pair")
        A("    s_lshl_b32 s43, s51, 21")
        A("    s_lshl_b32 s50, s51, 1")
        A("    s_and_b32 s52, s50, 0xfffffffc")
        A("    s_add_u32 s52, s52, 0x100000")
        A("    s_getreg_b32 s54, hwreg(HW_REG_XCC_ID)")
        A("    s_lshr_b32 s54, s54, 2")
        A("    s_and_b32 s50, s50, 3")
        A("    s_lshl_b32 s50, s50, 3")
    else:
        A("    s_lshl_b32 s43, s2, 20")
    REG = 0x200000 if local else 0x100000
    A("    s_cmp_eq_u32 s36, 0")
    A(f"    s_cselect_b32 s22, {2*REG:#x}, 0")
    A("    s_mov_b32 s23, 0x20000")
    A("    s_cselect_b32 s26, 0x20000, 0")
    A("    s_mov_b32 s27, 0x20000")
    A("    s_cselect_b32 s47, 32, 1")

    def mask(dst, spec):
        A(f"    s_mov_b32 {dst}, 0")
        k = 0
        while k < len(spec):
            if spec[k] == '.':
                k += 1
                continue
            n = 1
            while k + n < len(spec) and spec[k + n] != '.' and int(spec[k + n]) == int(spec[k]) + n:
                n += 1
            A(f"    s_bfe_u32 s58, s2, {int(spec[k]) | (n << 16):#x}")
            A(f"    s_lshl_b32 s58, s58, {13+k}")
            A(f"    s_or_b32 {dst}, {dst}, s58")
            k += n
    mask("s56", xr)
    A("    s_mov_b32 s57, 0")
    A("    s_mov_b32 s39, 0")
    A("    s_waitcnt lgkmcnt(0)")
    if local:
        A("    s_load_dword s53, s[18:19], s52")
        A("    s_add_u32 s52, s52, 256")
        A("    s_load_dword s55, s[18:19], s52")
        A("    s_waitcnt lgkmcnt(0)")
        A("    s_lshr_b32 s53, s53, s50")
        A("    s_xor_b32 s53, s53, s54")
        A("    s_and_b32 s53, s53, 1              ; parity K")
        A("    s_lshr_b32 s55, s55, s50")
        A("    s_xor_b32 s55, s55, s54")
        A("    s_and_b32 s55, s55, 1              ; parity V")
        A("    s_lshl_b32 s53, s53, 13")
        A("    s_lshl_b32 s55, s55, 13")
        A("    s_xor_b32 s55, s55, s56            ; mask V")
        A("    s_xor_b32 s53, s53, s56            ; mask K")
        A("    s_mov_b32 s56, s53")
    A("    s_add_u32 s20, s6, s43")
    A("    s_addc_u32 s21, s7, 0")
    A("    s_mov_b64 s[24:25], s[10:11]")
    if walk:
        A("    s_cmp_lg_u32 s36, 0")
        A("    s_cbranch_scc1 L_hpre")

    cf = (" " + cache) if cache else ""
    pf = (" " + pcache) if pcache else ""
    dstep = 16384 if local else 8192

    def issue(u, first=False, sw=False):
        p = u % 4
        if p == 0:
            blk = (u // 4) % 4
            if blk == 0:
                if not first:
                    A(f"    s_or_b32 s57, s57, {skip:#x}")
                    A(f"    s_add_u32 s57, s57, 2048")
                    A(f"    s_and_b32 s57, s57, {~skip & 0xffffffff:#x}")
                if sw:
                    A(f"    s_cmp_ge_u32 s57, {REG:#x}")
                    A("    s_cselect_b64 s[20:21], s[44:45], s[20:21]")
                    A("    s_cselect_b64 s[24:25], s[12:13], s[24:25]")
                    if local:
                        A("    s_cselect_b32 s56, s55, s56")
                A("    s_xor_b32 s39, s57, s56")
            else:
                prev = blk - 1
                d = 0
                for k in range(2):
                    if ((blk ^ prev) >> k) & 1:
                        d |= 1 << bp[k]
                A(f"    s_xor_b32 s39, s39, {d:#x}")
        if p == 3 and not int(noe):
            A("    s_bfe_u32 s40, s39, 0xd0007         ; (off >> 7) & 8191")
            r = AP + 4 * ((u // 4) % 4)
            A(f"    buffer_load_dwordx4 a[{r}:{r+3}], v2, s[24:27], s40 offen{pf}")
        r = RING + 8 * (u % U)
        for h in range(2):
            o = 512 * p + 256 * h
            off = f" offset:{o}" if o else ""
            if jxb:
                A(f"    buffer_load_dwordx4 v[{r+4*h}:{r+4*h+3}], v{VJ+2*p+h}, s[20:23], s39 offen{cf}")
            else:
                A(f"    buffer_load_dwordx4 v[{r+4*h}:{r+4*h+3}], v1, s[20:23], s39 offen{off}{cf}")

    def nwait(s):
        return 2 * (D - 1) + (0 if int(noe) else sum(1 for u in range(s + 1, s + D) if u % 4 == 3))

    def step(s, isv):
        A(f"    s_waitcnt vmcnt({nwait(s)})")
        p = s % 4
        r = RING + 8 * (s % U)
        if int(btrace) and p == 3 and not isv:
            A("    s_memtime s[72:73]")
        issue(s + D, sw=not isv)
        if int(btrace) and p == 3 and not isv:
            A("    s_min_u32 s75, s74, 63")
            A("    s_mov_b32 m0, s75")
            A("    s_add_u32 s74, s74, 1")
            A("    s_waitcnt lgkmcnt(0)")
            A(f"    v_writelane_b32 v{VT}, s72, m0")
        for i in range(8):
            sel = "s38" if (i & 1) else "s37"
            A(f"    v_perm_b32 v{ST+4*i+p}, v{r+4+(i>>1)}, v{r+(i>>1)}, {sel}")
        if p == 3:
            pa = AP + 4 * ((s // 4) % 4)
            for i in range(8):
                t = ST + 4 * i
                if isv:
                    c = VA + 4 * i
                    A(f"    v_mfma_f32_16x16x32_bf16 v[{c}:{c+3}], a[{pa}:{pa+3}], v[{t}:{t+3}], v[{c}:{c+3}]")
                else:
                    c = AK + 4 * i
                    A(f"    v_mfma_f32_16x16x32_bf16 a[{c}:{c+3}], v[{t}:{t+3}], a[{pa}:{pa+3}], a[{c}:{c+3}]")

    def trace(tag):
        if stamp and not int(btrace):
            A("    s_and_b32 s75, s47, 1")
            A(f"    s_cbranch_scc1 L_notr_{tag}")
            A("    s_memrealtime s[72:73]")
            A("    s_waitcnt lgkmcnt(0)")
            A("    s_sub_u32 s72, s72, s60")
            A("    s_mov_b32 m0, s74")
            A("    s_add_u32 s74, s74, 1")
            A("    s_nop 4")
            A(f"    v_writelane_b32 v{VT}, s72, m0")
            A(f"L_notr_{tag}:")

    if int(hold):
        A("    s_barrier")
    if int(diag):
        A("    s_getreg_b32 s92, hwreg(HW_REG_XCC_ID)")
        A("    s_lshr_b32 s92, s92, 2")
        A("    s_and_b32 s92, s92, 1")
        for t, (lo, hi) in enumerate(((6, 7), (8, 9))):
            A(f"    s_add_u32 s62, s{lo}, s43")
            A(f"    s_addc_u32 s63, s{hi}, 0")
            A("    s_mov_b32 s90, 0")
            A("    s_mov_b32 s91, 0x40000")
            A(f"L_diag{t}:")
            for b in range(2):
                A(f"    s_add_u32 s93, s91, {8192*b}")
                A(f"    s_xor_b32 s94, s93, 8192")
                A("    s_load_dword s80, s[62:63], s93")
                A("    s_load_dword s81, s[62:63], s94")
                A("    s_waitcnt lgkmcnt(1)")
                A("    s_memtime s[82:83]")
                A("    s_waitcnt lgkmcnt(0)")
                A("    s_memtime s[84:85]")
                A("    s_waitcnt lgkmcnt(0)")
                A("    s_sub_u32 s84, s84, s82")
                A("    s_min_u32 s84, s84, 300")
                A(f"    s_{'add' if b == 0 else 'sub'}_u32 s90, s90, s84")
                A("    s_add_u32 s91, s91, 1280")
            A("    s_add_u32 s91, s91, 13824")
            A("    s_cmp_lt_u32 s91, 0x80000")
            A(f"    s_cbranch_scc1 L_diag{t}")
            A("    s_cmp_lt_i32 s90, 0")
            A("    s_cselect_b32 s90, 1, 0")
            A("    s_xor_b32 s90, s90, s92")
            A("    s_and_b32 s93, s2, 31")
            A("    s_lshl_b32 s90, s90, s93")
            A("    s_lshr_b32 s93, s2, 5")
            A("    s_lshl_b32 s93, s93, 2")
            A(f"    s_add_u32 s93, s93, {32*t}")
            A("    v_mov_b32 v8, s93")
            A("    v_mov_b32 v9, s90")
            A("    s_mov_b64 exec, 1")
            A("    global_atomic_or v8, v9, s[16:17]")
            A("    s_mov_b64 exec, -1")
        A("    s_waitcnt vmcnt(0)")
    NF = 2 * D + sum(1 for u in range(D) if u % 4 == 3 and not int(noe))
    if int(gap):
        gl_ = int(gl)
        A(f"    v_and_b32 v8, {gl_-1}, v0")
        A(f"    v_mul_u32_u24 v8, {8192//gl_ + (256 if gl_ < 16 else 0)}, v8")
        A("    v_and_b32 v8, 0x1fff, v8")
        A("    s_mov_b32 s80, 0x80000")
        A("    s_mov_b32 s81, 0x82000")
        A("    buffer_load_dword v10, v8, s[20:23], s80 offen")
        A("    buffer_load_dword v11, v8, s[20:23], s81 offen")
    if not int(ghold):
        for u in range(D):
            issue(u, first=(u == 0))
    if int(gap):
        nf = 0 if int(ghold) else NF
        A(f"    s_waitcnt vmcnt({nf+1})")
        A("    s_memtime s[82:83]")
        A(f"    s_waitcnt vmcnt({nf})")
        A("    s_memtime s[84:85]")
        if int(ghold) == 2:
            A("    buffer_load_dword v11, v8, s[20:23], s81 offen offset:128")
            A("    buffer_load_dword v10, v8, s[20:23], s80 offen offset:128")
            A(f"    s_waitcnt vmcnt(1)")
            A("    s_memtime s[86:87]")
            A(f"    s_waitcnt vmcnt(0)")
            A("    s_memtime s[88:89]")
        else:
            A("    s_mov_b32 s86, 0")
            A("    s_mov_b32 s88, 0")
    if int(ghold):
        for u in range(D):
            issue(u, first=(u == 0))
    if int(gap):
        A("    s_waitcnt lgkmcnt(0)")
        A("    s_sub_u32 s90, s84, s82")
        A("    s_sub_u32 s91, s88, s86")
    A("    s_branch L_setup")
    A("L_hpre:")
    if int(sgap):
        A("    s_lshl_b32 s64, s36, 11             ; wave*128KiB")
        A("    s_add_u32 s64, s64, 0x60000")
        A("    s_add_u32 s62, s20, s64")
        A("    s_addc_u32 s63, s21, 0")
        A("    v_mov_b32 v9, 0")
        A("    v_mov_b32 v10, 0")
        for r in range(int(sgap)):
            o = (r // 2) * 16384 + (r & 1) * 4096 + ((r * 5) & 15) * 256
            first, second = (o, o + 8192) if r % 2 == 0 else (o + 8192, o)
            A("    s_memtime s[86:87]")
            A("    s_waitcnt lgkmcnt(0)")
            if int(vec):
                A(f"    v_mov_b32 v11, {first}")
                A(f"    v_mov_b32 v12, {second}")
                A("    global_load_dword v13, v11, s[62:63]")
                A("    global_load_dword v14, v12, s[62:63]")
                A("    s_waitcnt vmcnt(1)")
                A("    s_memtime s[82:83]")
                A("    s_waitcnt vmcnt(0)")
            else:
                A(f"    s_load_dword s80, s[62:63], {first:#x}")
                A(f"    s_load_dword s81, s[62:63], {second:#x}")
                A("    s_waitcnt lgkmcnt(1)")
                A("    s_memtime s[82:83]")
                A("    s_waitcnt lgkmcnt(0)")
            A("    s_memtime s[84:85]")
            A("    s_waitcnt lgkmcnt(0)")
            A("    s_sub_u32 s84, s84, s82")
            A("    s_sub_u32 s82, s82, s86")
            A("    s_lshl_b32 s82, s82, 16")
            A("    s_or_b32 s84, s84, s82")
            A(f"    v_writelane_b32 v9, s84, {r}")
        A("    s_lshl_b32 s64, s2, 8")
        A("    s_add_u32 s64, s64, s36")
        A("    s_add_u32 s64, s64, 0x2fffc0")
        A("    v_lshl_add_u32 v8, v0, 2, s64")
        A("    s_mov_b64 exec, 0xffff")
        A("    global_store_dword v8, v9, s[18:19]")
        A("    s_mov_b64 exec, -1")
        A("    s_cmp_gt_u32 s36, 64")
        A("    s_cbranch_scc1 L_end")
    if int(race):
        N = int(rn)
        A("    s_add_u32 s62, s20, 0x80000")
        A("    s_addc_u32 s63, s21, 0")
        A("    v_mov_b32 v9, 0")
        for r in range(int(race)):
            regs = list(range(80, 80 + 2 * N))
            for x in regs:
                A(f"    s_mov_b32 s{x}, 0x7fc1ffc3")
            order = []
            for i in range(N):
                order += [(i, 0), (i, 1)] if (i + r) % 2 == 0 else [(i, 1), (i, 0)]
            half = 128 if (int(rwarm) and r % 2 == 1) else 0
            rr = r // 2 if int(rwarm) else r
            for (i, b) in order:
                off = rr * 16384 + b * 8192 + i * 1024 + (rr & 3) * 256 + half
                A(f"    s_load_dword s{80 + 2*i + b}, s[62:63], {off:#x}")
            A(f"    s_waitcnt lgkmcnt({N})")
            A("    s_mov_b32 s64, 0")
            A("    s_mov_b32 s65, 0")
            for (i, b) in order:
                A(f"    s_cmp_lg_u32 s{80 + 2*i + b}, 0x7fc1ffc3")
                A(f"    s_addc_u32 s{64 + b}, s{64 + b}, 0")
            A("    s_waitcnt lgkmcnt(0)")
            A("    s_memrealtime s[66:67]")
            A("    s_lshl_b32 s65, s65, 8")
            A("    s_or_b32 s64, s64, s65")
            A("    s_waitcnt lgkmcnt(0)")
            A("    s_sub_u32 s66, s66, s60")
            A("    s_lshl_b32 s66, s66, 16")
            A("    s_or_b32 s64, s64, s66")
            A(f"    v_writelane_b32 v9, s64, {r}")
            if int(hold) and r == int(hold) - 1:
                A("    s_barrier")
        A("    s_lshl_b32 s64, s2, 8")
        A("    s_add_u32 s64, s64, 0x300000")
        A("    v_lshl_add_u32 v8, v0, 2, s64")
        A("    global_store_dword v8, v9, s[18:19]")
    if int(pref):
        A("    s_lshr_b32 s58, s2, 3")
        A("    s_lshl_b32 s58, s58, 12")
        A("    v_lshl_add_u32 v8, v0, 4, s58")
        for k in range(4):
            A(f"    global_load_dwordx4 v[{RING+4*k}:{RING+4*k+3}], v8, s[10:11] offset:{1024*k}")
        if int(pref) > 1:
            for k in range(4):
                A(f"    global_load_dwordx4 v[{RING+16+4*k}:{RING+16+4*k+3}], v8, s[12:13] offset:{1024*k}")
    A("L_setup:")
    A("    s_mov_b32 s37, 0x05040100")
    A("    s_mov_b32 s38, 0x07060302")
    A("    s_add_u32 s44, s8, s43")
    A("    s_addc_u32 s45, s9, 0")
    A(f"    s_sub_u32 s44, s44, {REG:#x}")
    A("    s_subb_u32 s45, s45, 0")
    A("    s_lshl_b32 s46, s2, 11")
    A("    s_add_u32 s32, s14, s46")
    A("    s_addc_u32 s33, s15, 0")
    A("    s_cmp_eq_u32 s36, 0")
    A("    s_cselect_b32 s34, 2048, 0")
    A("    s_mov_b32 s35, 0x20000")
    A(f"    s_cselect_b32 s41, 0, {LDS_SCR}")
    A("    s_cselect_b32 s42, 31, 1")
    A("    v_lshl_add_u32 v3, v0, 4, s41")
    A("    v_lshl_add_u32 v4, v0, 3, s41")
    A("    v_lshlrev_b32 v5, 10, v6")
    A("    v_lshl_add_u32 v5, v7, 4, v5")
    for i in range(32):
        A(f"    v_accvgpr_write_b32 a{AK+i}, 0")
    for i in range(0, 32, 2):
        A(f"    v_pk_mov_b32 v[{VA+i}:{VA+i+1}], 0, 0")
    if not walk:
        A("    s_cmp_lg_u32 s36, 0")
        A("    s_cbranch_scc1 L_helper")
    if stamp:
        A("    s_memrealtime s[68:69]")
        A(f"    s_waitcnt vmcnt({nwait(0)})")
        A("    s_memrealtime s[70:71]")
        A("    s_mov_b32 s74, 0")
    A("L_loop_k:")
    for s in range(U):
        step(s, False)
    trace("k")
    A("    s_sub_u32 s47, s47, 1")
    A("    s_cmp_lg_u32 s47, 0")
    A("    s_cbranch_scc1 L_loop_k")
    for i in range(8):
        A(f"    ds_write_b128 v3, a[{AK+4*i}:{AK+4*i+3}] offset:{LDS_K+1024*i}")
    A("    s_mov_b32 s47, 1")
    A("L_loop_v:")
    for s in range(U):
        step(s, True)
    trace("v")
    A("    s_sub_u32 s47, s47, 1")
    A("    s_cmp_lg_u32 s47, 0")
    A("    s_cbranch_scc1 L_loop_v")
    A("    s_cmp_lg_u32 s36, 0")
    A("    s_cbranch_scc1 L_nobar")
    A("    s_waitcnt lgkmcnt(0)")
    A("    s_barrier")
    A("L_nobar:")
    A("    s_mov_b32 s47, s42")
    A("    s_mov_b32 s42, 0")
    A("    s_cmp_lg_u32 s47, 0")
    A("    s_cbranch_scc1 L_loop_v")
    if stamp:
        A("    s_memrealtime s[62:63]")
        A("    s_waitcnt lgkmcnt(0)")
    PR = ST + 16
    A(f"    ds_read_b64 v[{PR}:{PR+1}], v4 offset:{LDS_P}")
    for i in range(8):
        A(f"    v_cvt_pk_bf16_f32 v{ST+2*i}, v{VA+4*i}, v{VA+4*i+1}")
        A(f"    v_cvt_pk_bf16_f32 v{ST+2*i+1}, v{VA+4*i+2}, v{VA+4*i+3}")
    A("    s_waitcnt lgkmcnt(0)")
    for i in range(8):
        A(f"    v_mfma_f32_16x16x16_bf16 v[{VA+4*i}:{VA+4*i+3}], v[{PR}:{PR+1}], v[{ST+2*i}:{ST+2*i+1}], 0")
    A("    s_nop 1")
    for p in range(4):
        for r in range(4):
            A(f"    v_cvt_pk_bf16_f32 v{ST+4*r+p}, v{VA+4*(2*p)+r}, v{VA+4*(2*p+1)+r}")
    for r in range(4):
        off = f" offset:{256*r}" if r else ""
        A(f"    buffer_store_dwordx4 v[{ST+4*r}:{ST+4*r+3}], v5, s[32:35], 0 offen{off}")
    A("    s_cmp_lg_u32 s36, 0")
    A("    s_cbranch_scc1 L_helper")
    if stamp:
        A("    s_waitcnt vmcnt(0)")
        A("    s_memrealtime s[64:65]")
        A("    s_getreg_b32 s66, hwreg(HW_REG_XCC_ID)")
        A("    s_getreg_b32 s67, hwreg(HW_REG_HW_ID)")
        A("    s_waitcnt lgkmcnt(0)")
        A("    s_lshl_b32 s46, s2, 6")
        for i in range(12):
            A(f"    v_mov_b32 v{8+i}, s{60+i}")
        A("    v_mov_b32 v4, s46")
        A("    s_lshl_b32 s47, s46, 2")
        A("    s_add_u32 s47, s47, 0x200000")
        A("    v_lshl_add_u32 v5, v0, 2, s47")
        A(f"    global_store_dword v5, v{VT}, s[18:19]")
        A("    s_mov_b64 exec, 1")
        if int(gap):
            A("    s_lshl_b32 s64, s2, 8")
            A("    s_add_u32 s64, s64, 0x300000")
            A("    v_mov_b32 v24, s64")
            A("    v_mov_b32 v26, s90")
            A("    v_mov_b32 v27, s91")
            A("    global_store_dwordx2 v24, v[26:27], s[18:19]")
        A("    global_store_dwordx4 v4, v[8:11], s[18:19]")
        A("    global_store_dwordx4 v4, v[12:15], s[18:19] offset:16")
        A("    global_store_dwordx4 v4, v[16:19], s[18:19] offset:32")
    if spin:
        A("    s_waitcnt vmcnt(0)")
        A("    s_memrealtime s[72:73]")
        A("    s_waitcnt lgkmcnt(0)")
        A("    s_sub_u32 s72, s72, s60")
        A("    v_mov_b32 v4, 0")
        A("    v_mov_b32 v5, s72")
        A("    s_mov_b64 exec, 1")
        A("    global_atomic_umax v4, v5, s[16:17]")
    A("L_end:")
    A("    s_endpgm")

    A("L_helper:")
    Q = RING
    KP = RING + 16
    KB = RING + 48
    X = RING + 64
    a, b = X + 4, X + 5
    A("    s_add_u32 s28, s4, s46")
    A("    s_addc_u32 s29, s5, 0")
    A("    s_mov_b32 s30, 2048")
    A("    s_mov_b32 s31, 0x20000")
    A("    v_lshlrev_b32 v3, 8, v7")
    A("    v_lshl_add_u32 v3, v6, 6, v3        ; q voffset = c*256 + g*64")
    A("    s_waitcnt vmcnt(0)")
    for kk in range(4):
        off = f" offset:{16*kk}" if kk else ""
        A(f"    buffer_load_dwordx4 v[{Q+4*kk}:{Q+4*kk+3}], v3, s[28:31], 0 offen{off}")
    if touch:
        A("    s_mov_b64 s[20:21], s[44:45]")
        A(f"    s_mov_b32 s22, {2*REG:#x}")
        A("    s_mov_b64 s[24:25], s[12:13]")
        A("    s_mov_b32 s26, 0x20000")
        A("    s_mov_b32 s34, 2048")
        A(f"    s_mov_b32 s39, {REG:#x}")
        A("    v_mov_b32 v8, 0")
        A(f"    buffer_load_dword v9, v8, s[20:23], s39 offen{cf}")
        A("    buffer_load_dword v10, v8, s[24:27], 0 offen")
        A("    buffer_load_dword v11, v8, s[32:35], 0 offen")
    A("    v_lshlrev_b32 v3, 4, v0")
    A("    v_lshlrev_b32 v4, 3, v0")
    A("    s_mov_b32 s46, 0x3db504f3          ; 128^-0.5")
    A("    s_mov_b32 s48, 0x3fb8aa3b          ; log2(e)")
    A("    s_mov_b32 s49, 0xffff0000")
    A("    s_waitcnt lgkmcnt(0)")
    A("    s_barrier")
    for i in range(8):
        A(f"    ds_read_b128 v[{KP+4*i}:{KP+4*i+3}], v3 offset:{LDS_K+1024*i}")
    A("    s_waitcnt vmcnt(0) lgkmcnt(0)")
    for kk in range(4):
        for p in range(4):
            A(f"    v_cvt_pk_bf16_f32 v{KB+4*kk+p}, v{KP+4*(2*p)+kk}, v{KP+4*(2*p+1)+kk}")
    A("    s_nop 1")
    for kk in range(4):
        c = "0" if kk == 0 else f"v[{X}:{X+3}]"
        A(f"    v_mfma_f32_16x16x32_bf16 v[{X}:{X+3}], v[{KB+4*kk}:{KB+4*kk+3}], v[{Q+4*kk}:{Q+4*kk+3}], {c}")
    A("    s_nop 7")

    def rnd():
        A(f"    v_cvt_pk_bf16_f32 v{a}, v{X}, v{X+1}")
        A(f"    v_cvt_pk_bf16_f32 v{b}, v{X+2}, v{X+3}")
        A(f"    v_lshlrev_b32 v{X}, 16, v{a}")
        A(f"    v_and_b32 v{X+1}, s49, v{a}")
        A(f"    v_lshlrev_b32 v{X+2}, 16, v{b}")
        A(f"    v_and_b32 v{X+3}, s49, v{b}")
    rnd()
    for r in range(4):
        A(f"    v_mul_f32 v{X+r}, s46, v{X+r}")
    rnd()

    def xred(op):
        A(f"    v_mov_b32 v{b}, v{a}")
        A("    s_nop 1")
        A(f"    v_permlane16_swap_b32 v{a}, v{b}")
        A(f"    {op} v{a}, v{a}, v{b}")
        A(f"    v_mov_b32 v{b}, v{a}")
        A("    s_nop 1")
        A(f"    v_permlane32_swap_b32 v{a}, v{b}")
        A(f"    {op} v{a}, v{a}, v{b}")
    A(f"    v_max_f32 v{a}, v{X}, v{X+1}")
    A(f"    v_max3_f32 v{a}, v{X+2}, v{X+3}, v{a}")
    xred("v_max_f32")
    for r in range(4):
        A(f"    v_sub_f32 v{X+r}, v{X+r}, v{a}")
    for r in range(4):
        A(f"    v_mul_f32 v{X+r}, s48, v{X+r}")
    for r in range(4):
        A(f"    v_exp_f32 v{X+r}, v{X+r}")
    A("    s_nop 0")
    A(f"    v_add_f32 v{a}, v{X}, v{X+1}")
    A(f"    v_add_f32 v{b}, v{X+2}, v{X+3}")
    A(f"    v_add_f32 v{a}, v{a}, v{b}")
    xred("v_add_f32")
    A(f"    v_rcp_f32 v{a}, v{a}")
    A("    s_nop 0")
    for r in range(4):
        A(f"    v_mul_f32 v{X+r}, v{X+r}, v{a}")
    A(f"    v_cvt_pk_bf16_f32 v{X+6}, v{X}, v{X+1}")
    A(f"    v_cvt_pk_bf16_f32 v{X+7}, v{X+2}, v{X+3}")
    A(f"    ds_write_b64 v4, v[{X+6}:{X+7}] offset:{LDS_P}")
    A("    s_waitcnt lgkmcnt(0)")
    A("    s_barrier")
    A("    s_endpgm")

    A('.section .rodata,"a"')
    A(".p2align 6")
    A(f".amdhsa_kernel {NAME}_kernel")
    A(f"  .amdhsa_next_free_vgpr {total}")
    A("  .amdhsa_next_free_sgpr 100")
    A(f"  .amdhsa_accum_offset {acc_off}")
    A("  .amdhsa_group_segment_fixed_size 0")
    A("  .amdhsa_kernarg_size 64")
    A("  .amdhsa_user_sgpr_count 2")
    A("  .amdhsa_user_sgpr_kernarg_segment_ptr 1")
    A("  .amdhsa_system_sgpr_workgroup_id_x 1")
    A("  .amdhsa_float_denorm_mode_32 3")
    A(".end_amdhsa_kernel")
    return "\n".join(L) + "\n"


if __name__ == "__main__":
    out = sys.argv[1]
    kw = dict(a.split("=", 1) for a in sys.argv[2:])
    open(out, "w").write(gen(**kw))
```

```python
import sys

NAME = "standalone__low_rank_proj_linformer__sampling"

HEADER = """; Kernarg layout for this problem (64 bytes, ptrs only, base s[0:1]):
"""


def gen(modes="9,11,13", init=1, thr="-40,40", smask=0x78, lflag="sc1", sflag="sc1", back=1, pack=0, noload=0, noatom=0, period=4, first=4, last=60, sleep=4, cache="nt", pcache="", stamp=0, lds=90000, local=0, xr="", walk=1, touch=1, spin=0, cstride=4, gpos="11,12", bpos="", pref=0, periods="", iodref=0):
    modes = [int(x) for x in modes.split(",")]; thr = [int(x) for x in thr.split(",")] if thr else []
    init = int(init); back = int(back); pack = int(pack); jsh = 2 if pack else 7; smask = int(str(smask), 0); period = int(period); first = int(first); last = int(last); sleep = int(sleep); cstride = int(cstride)
    assert len(thr) == len(modes) - 1
    M = len(modes)
    D = max(modes); stamp = int(stamp); lds = int(lds); local = int(local); walk = int(walk); touch = int(touch)
    spin = int(spin)
    g0, g1 = [int(x) for x in gpos.split(",")]
    skip = (1 << g0) | (1 << g1) | ((1 << 13) if int(local) else 0)
    if bpos:
        bp = [int(x) for x in bpos.split(",")]
    else:
        bp = [b for b in range(11, 21) if not (skip >> b) & 1][:2]
    skip |= (1 << bp[0]) | (1 << bp[1])
    L = []
    A = L.append
    U = 16
    assert D <= 15
    ST = 8
    VA = 40
    RING = 72
    nv = RING + 8 * U
    VC = nv
    nv += 4
    VT = nv
    if stamp:
        nv += 1
    acc_off = (nv + 3) // 4 * 4
    AK = 0
    AP = 32
    total = acc_off + 48
    LDS_K = 0
    LDS_P = 8192
    LDS_C = 8704
    LDS_SCR = 9216
    lds = max(lds, LDS_SCR + 9216)

    A(HEADER + f"; @launch grid=(256,1,1) block=(128,1,1) lds={lds}")
    A('.amdgcn_target "amdgcn-amd-amdhsa--gfx950"')
    A(".text")
    A(f".globl {NAME}_kernel")
    A(".p2align 8")
    A(f".type {NAME}_kernel,@function")
    A(f"{NAME}_kernel:")
    A("    s_load_dwordx16 s[4:19], s[0:1], 0")
    if stamp or spin:
        A("    s_memrealtime s[60:61]")
    if stamp:
        A(f"    v_mov_b32 v{VT}, 0")
    A("    s_cmp_ge_u32 s2, 256")
    A("    s_cbranch_scc1 L_end")
    A("    v_readfirstlane_b32 s36, v0")
    A(f"    v_mov_b32 v{ST}, 0")
    A(f"    v_mov_b32 v{ST+1}, {init}")
    A(f"    v_mov_b32 v{ST+2}, 0")
    A(f"    ds_write_b96 v{ST}, v[{ST}:{ST+2}] offset:{LDS_C}")
    A("    v_and_b32 v0, 63, v0                ; lane")
    A("    v_lshrrev_b32 v6, 4, v0             ; g")
    A("    v_and_b32 v7, 15, v0                ; c")
    A("    v_and_b32 v3, 1, v6")
    A("    v_lshrrev_b32 v4, 1, v6")
    A(f"    v_lshlrev_b32 v1, {g0}, v3")
    A(f"    v_lshl_add_u32 v1, v4, {g1}, v1")
    A("    v_lshrrev_b32 v2, 7, v1")
    A("    v_lshl_add_u32 v1, v7, 4, v1")
    A("    v_lshl_add_u32 v2, v7, 13, v2")
    if local:
        A("    s_lshr_b32 s51, s2, 3")
        A("    s_lshl_b32 s51, s51, 2")
        A("    s_and_b32 s52, s2, 3")
        A("    s_add_u32 s51, s51, s52            ; pair")
        A("    s_lshl_b32 s43, s51, 21")
        A("    s_lshl_b32 s50, s51, 1")
        A("    s_and_b32 s52, s50, 0xfffffffc")
        A("    s_add_u32 s52, s52, 0x100000")
        A("    s_getreg_b32 s54, hwreg(HW_REG_XCC_ID)")
        A("    s_lshr_b32 s54, s54, 2")
        A("    s_and_b32 s50, s50, 3")
        A("    s_lshl_b32 s50, s50, 3")
    else:
        A("    s_lshl_b32 s43, s2, 20")
    REG = 0x200000 if local else 0x100000
    A("    s_cmp_eq_u32 s36, 0")
    A(f"    s_cselect_b32 s22, {2*REG:#x}, 0")
    A("    s_mov_b32 s23, 0x20000")
    A("    s_cselect_b32 s26, 0x20000, 0")
    A("    s_mov_b32 s27, 0x20000")

    def mask(dst, spec):
        A(f"    s_mov_b32 {dst}, 0")
        k = 0
        while k < len(spec):
            if spec[k] == '.':
                k += 1
                continue
            n = 1
            while k + n < len(spec) and spec[k + n] != '.' and int(spec[k + n]) == int(spec[k]) + n:
                n += 1
            A(f"    s_bfe_u32 s58, s2, {int(spec[k]) | (n << 16):#x}")
            A(f"    s_lshl_b32 s58, s58, {13+k}")
            A(f"    s_or_b32 {dst}, {dst}, s58")
            k += n
    mask("s56", xr)
    A("    s_mov_b32 s57, 0")
    A("    s_mov_b32 s39, 0")
    A("    s_waitcnt lgkmcnt(0)")
    A("    s_barrier")
    if local:
        A("    s_load_dword s53, s[18:19], s52")
        A("    s_add_u32 s52, s52, 256")
        A("    s_load_dword s55, s[18:19], s52")
        A("    s_waitcnt lgkmcnt(0)")
        A("    s_lshr_b32 s53, s53, s50")
        A("    s_xor_b32 s53, s53, s54")
        A("    s_and_b32 s53, s53, 1              ; parity K")
        A("    s_lshr_b32 s55, s55, s50")
        A("    s_xor_b32 s55, s55, s54")
        A("    s_and_b32 s55, s55, 1              ; parity V")
        A("    s_lshl_b32 s53, s53, 13")
        A("    s_lshl_b32 s55, s55, 13")
        A("    s_xor_b32 s55, s55, s56            ; mask V")
        A("    s_xor_b32 s53, s53, s56            ; mask K")
        A("    s_mov_b32 s56, s53")
    A("    s_add_u32 s20, s6, s43")
    A("    s_addc_u32 s21, s7, 0")
    A("    s_mov_b64 s[24:25], s[10:11]")
    if walk:
        A("    s_cmp_lg_u32 s36, 0")
        A("    s_cbranch_scc1 L_hpre")

    cf = (" " + cache) if cache else ""
    pf = (" " + pcache) if pcache else ""
    dstep = 16384 if local else 8192

    def issue(u, first=False, sw=False):
        p = u % 4
        if p == 0:
            blk = (u // 4) % 4
            if blk == 0:
                if not first:
                    A(f"    s_or_b32 s57, s57, {skip:#x}")
                    A(f"    s_add_u32 s57, s57, 2048")
                    A(f"    s_and_b32 s57, s57, {~skip & 0xffffffff:#x}")
                if sw:
                    A(f"    s_cmp_ge_u32 s57, {REG:#x}")
                    A("    s_cselect_b64 s[20:21], s[44:45], s[20:21]")
                    A("    s_cselect_b64 s[24:25], s[12:13], s[24:25]")
                    if local:
                        A("    s_cselect_b32 s56, s55, s56")
                A("    s_xor_b32 s39, s57, s56")
            else:
                prev = blk - 1
                d = 0
                for k in range(2):
                    if ((blk ^ prev) >> k) & 1:
                        d |= 1 << bp[k]
                A(f"    s_xor_b32 s39, s39, {d:#x}")
        if p == 3:
            A("    s_bfe_u32 s40, s39, 0xd0007         ; (off >> 7) & 8191")
            r = AP + 4 * ((u // 4) % 4)
            A(f"    buffer_load_dwordx4 a[{r}:{r+3}], v2, s[24:27], s40 offen{pf}")
        r = RING + 8 * (u % U)
        for h in range(2):
            o = 512 * p + 256 * h
            off = f" offset:{o}" if o else ""
            A(f"    buffer_load_dwordx4 v[{r+4*h}:{r+4*h+3}], v1, s[20:23], s39 offen{off}{cf}")

    def nwait(s, dm=None):
        dm = D if dm is None else dm
        return 2 * (dm - 1) + sum(1 for u in range(s + D - dm + 1, s + D) if u % 4 == 3)

    def step(s, isv, dm):
        A(f"    s_waitcnt vmcnt({nwait(s, dm)})")
        p = s % 4
        r = RING + 8 * (s % U)
        issue(s + D, sw=not isv)
        for i in range(8):
            sel = "s38" if (i & 1) else "s37"
            A(f"    v_perm_b32 v{ST+4*i+p}, v{r+4+(i>>1)}, v{r+(i>>1)}, {sel}")
        if p == 3:
            pa = AP + 4 * ((s // 4) % 4)
            for i in range(8):
                t = ST + 4 * i
                if isv:
                    c = VA + 4 * i
                    A(f"    v_mfma_f32_16x16x32_bf16 v[{c}:{c+3}], a[{pa}:{pa+3}], v[{t}:{t+3}], v[{c}:{c+3}]")
                else:
                    c = AK + 4 * i
                    A(f"    v_mfma_f32_16x16x32_bf16 a[{c}:{c+3}], v[{t}:{t+3}], a[{pa}:{pa+3}], a[{c}:{c+3}]")

    def trace(tag):
        if stamp:
            A("    s_and_b32 s75, s47, 1")
            A(f"    s_cbranch_scc1 L_notr_{tag}")
            A("    s_memrealtime s[72:73]")
            A("    s_waitcnt lgkmcnt(0)")
            A("    s_sub_u32 s72, s72, s60")
            A("    s_mov_b32 m0, s74")
            A("    s_add_u32 s74, s74, 1")
            A("    s_nop 4")
            A(f"    v_writelane_b32 v{VT}, s72, m0")
            A(f"L_notr_{tag}:")

    for u in range(D):
        issue(u, first=(u == 0))
    A("    s_branch L_setup")
    A("L_hpre:")
    if int(pref):
        A("    s_lshr_b32 s58, s2, 3")
        A("    s_lshl_b32 s58, s58, 12")
        A("    v_lshl_add_u32 v8, v0, 4, s58")
        for k in range(4):
            A(f"    global_load_dwordx4 v[{RING+4*k}:{RING+4*k+3}], v8, s[10:11] offset:{1024*k}")
        for k in range(4):
            A(f"    global_load_dwordx4 v[{RING+16+4*k}:{RING+16+4*k+3}], v8, s[12:13] offset:{1024*k}")
    A("L_setup:")
    A("    s_mov_b32 s37, 0x05040100")
    A("    s_mov_b32 s38, 0x07060302")
    A("    s_add_u32 s44, s8, s43")
    A("    s_addc_u32 s45, s9, 0")
    A(f"    s_sub_u32 s44, s44, {REG:#x}")
    A("    s_subb_u32 s45, s45, 0")
    A("    s_lshl_b32 s46, s2, 11")
    A("    s_add_u32 s32, s14, s46")
    A("    s_addc_u32 s33, s15, 0")
    A("    s_cmp_eq_u32 s36, 0")
    A("    s_cselect_b32 s34, 2048, 0")
    A("    s_mov_b32 s35, 0x20000")
    A(f"    s_cselect_b32 s41, 0, {LDS_SCR}")
    A("    v_lshl_add_u32 v3, v0, 4, s41")
    A("    v_lshl_add_u32 v4, v0, 3, s41")
    A("    v_lshlrev_b32 v5, 10, v6")
    A("    v_lshl_add_u32 v5, v7, 4, v5")
    A(f"    v_mov_b32 v{VC}, s41")
    for i in range(32):
        A(f"    v_accvgpr_write_b32 a{AK+i}, 0")
    for i in range(0, 32, 2):
        A(f"    v_pk_mov_b32 v[{VA+i}:{VA+i+1}], 0, 0")
    A("    s_mov_b32 s47, 0                    ; iteration")
    if not walk:
        A("    s_cmp_lg_u32 s36, 0")
        A("    s_cbranch_scc1 L_helper")
    if stamp:
        A("    s_memrealtime s[68:69]")
        A(f"    s_waitcnt vmcnt({nwait(0)})")
        A("    s_memrealtime s[70:71]")
        A("    s_mov_b32 s74, 0")
        A("    s_waitcnt lgkmcnt(0)")
    order = [init] + [m for m in range(M) if m != init]

    def loops(t, isv, end):
        for idx, m in enumerate(order):
            A(f"L_{t}_{m}:")
            A(f"    v_mov_b32 v{VC+1}, s47")
            A(f"    ds_write_b32 v{VC}, v{VC+1} offset:{LDS_C}")
            A(f"    ds_read_b32 v{VC+2}, v{VC} offset:{LDS_C+4}")
            for s in range(U):
                step(s, isv, modes[m])
            trace(f"{t}{m}")
            A("    s_add_u32 s47, s47, 1")
            A("    s_waitcnt lgkmcnt(0)")
            A(f"    v_readfirstlane_b32 s42, v{VC+2}")
            if idx + 1 < M:
                A("    s_cmp_lg_u32 s36, 0")
                A(f"    s_cbranch_scc1 L_{t}_{order[idx+1]}")
                A(f"    s_branch L_{t}_disp")
        A("    s_cmp_lg_u32 s36, 0")
        A(f"    s_cselect_b32 s47, {end}, s47")
        A(f"L_{t}_disp:")
        if isv:
            A(f"    s_cmp_eq_u32 s47, {end-1}")
            A(f"    s_cbranch_scc1 L_{t}_{modes.index(D)}")
        A(f"    s_cmp_eq_u32 s47, {end}")
        A(f"    s_cbranch_scc1 L_{t}_done")
        A(f"L_{t}_sel:")
        for m in range(M - 1):
            A(f"    s_cmp_eq_u32 s42, {m}")
            A(f"    s_cbranch_scc1 L_{t}_{m}")
        A(f"    s_branch L_{t}_{M-1}")
        A(f"L_{t}_done:")

    loops("k", False, 32)
    for i in range(8):
        A(f"    ds_write_b128 v3, a[{AK+4*i}:{AK+4*i+3}] offset:{LDS_K+1024*i}")
    A("    s_cmp_eq_u32 s36, 0")
    A("    s_cbranch_scc1 L_v_sel")
    loops("v", True, 64)
    if stamp:
        A("    s_memrealtime s[62:63]")
        A("    s_waitcnt lgkmcnt(0)")
    PR = ST + 16
    A("L_pwait:")
    A(f"    ds_read_b32 v{VC+2}, v{VC} offset:{LDS_C+8}")
    A(f"    ds_read_b64 v[{PR}:{PR+1}], v4 offset:{LDS_P}")
    for i in range(8):
        A(f"    v_cvt_pk_bf16_f32 v{ST+2*i}, v{VA+4*i}, v{VA+4*i+1}")
        A(f"    v_cvt_pk_bf16_f32 v{ST+2*i+1}, v{VA+4*i+2}, v{VA+4*i+3}")
    A("    s_waitcnt lgkmcnt(0)")
    A(f"    v_readfirstlane_b32 s42, v{VC+2}")
    A("    s_or_b32 s42, s42, s36")
    A("    s_cbranch_scc0 L_pwait")
    for i in range(8):
        A(f"    v_mfma_f32_16x16x16_bf16 v[{VA+4*i}:{VA+4*i+3}], v[{PR}:{PR+1}], v[{ST+2*i}:{ST+2*i+1}], 0")
    A("    s_nop 1")
    for p in range(4):
        for r in range(4):
            A(f"    v_cvt_pk_bf16_f32 v{ST+4*r+p}, v{VA+4*(2*p)+r}, v{VA+4*(2*p+1)+r}")
    for r in range(4):
        off = f" offset:{256*r}" if r else ""
        A(f"    buffer_store_dwordx4 v[{ST+4*r}:{ST+4*r+3}], v5, s[32:35], 0 offen{off}")
    A("    s_cmp_lg_u32 s36, 0")
    A("    s_cbranch_scc1 L_helper")
    if stamp:
        A("    s_waitcnt vmcnt(0)")
        A("    s_memrealtime s[64:65]")
        A("    s_getreg_b32 s66, hwreg(HW_REG_XCC_ID)")
        A("    s_getreg_b32 s67, hwreg(HW_REG_HW_ID)")
        A("    s_waitcnt lgkmcnt(0)")
        A("    s_lshl_b32 s46, s2, 6")
        for i in range(12):
            A(f"    v_mov_b32 v{8+i}, s{60+i}")
        A("    v_mov_b32 v4, s46")
        A("    s_lshl_b32 s47, s46, 2")
        A("    s_add_u32 s47, s47, 0x200000")
        A("    v_lshl_add_u32 v5, v0, 2, s47")
        A(f"    global_store_dword v5, v{VT}, s[18:19]")
        A("    s_mov_b64 exec, 1")
        A("    global_store_dwordx4 v4, v[8:11], s[18:19]")
        A("    global_store_dwordx4 v4, v[12:15], s[18:19] offset:16")
        A("    global_store_dwordx4 v4, v[16:19], s[18:19] offset:32")
    if spin:
        A("    s_waitcnt vmcnt(0)")
        A("    s_memrealtime s[72:73]")
        A("    s_waitcnt lgkmcnt(0)")
        A("    s_sub_u32 s72, s72, s60")
        A("    v_mov_b32 v4, 0")
        A("    v_mov_b32 v5, s72")
        A("    s_mov_b64 exec, 1")
        A("    global_atomic_umax v4, v5, s[16:17]")
    A("L_end:")
    A("    s_endpgm")

    A("L_helper:")
    Q = RING
    KP = RING + 16
    KB = RING + 48
    X = RING + 64
    a, b = X + 4, X + 5
    A("    s_add_u32 s28, s4, s46")
    A("    s_addc_u32 s29, s5, 0")
    A("    s_mov_b32 s30, 2048")
    A("    s_mov_b32 s31, 0x20000")
    A("    v_lshlrev_b32 v3, 8, v7")
    A("    v_lshl_add_u32 v3, v6, 6, v3        ; q voffset = c*256 + g*64")
    A("    s_waitcnt vmcnt(0)")
    for kk in range(4):
        off = f" offset:{16*kk}" if kk else ""
        A(f"    buffer_load_dwordx4 v[{Q+4*kk}:{Q+4*kk+3}], v3, s[28:31], 0 offen{off}")
    if touch:
        A("    s_mov_b64 s[20:21], s[44:45]")
        A(f"    s_mov_b32 s22, {2*REG:#x}")
        A("    s_mov_b64 s[24:25], s[12:13]")
        A("    s_mov_b32 s26, 0x20000")
        A("    s_mov_b32 s34, 2048")
        A(f"    s_mov_b32 s39, {REG:#x}")
        A("    v_mov_b32 v8, 0")
        A(f"    buffer_load_dword v9, v8, s[20:23], s39 offen{cf}")
        A("    buffer_load_dword v10, v8, s[24:27], 0 offen")
        A("    buffer_load_dword v11, v8, s[32:35], 0 offen")
    A("    v_lshlrev_b32 v3, 4, v0")
    A("    v_lshlrev_b32 v4, 3, v0")
    A("    s_mov_b32 s46, 0x3db504f3          ; 128^-0.5")
    A("    s_mov_b32 s48, 0x3fb8aa3b          ; log2(e)")
    A("    s_mov_b32 s49, 0xffff0000")
    A(f"    v_mov_b32 v{VC}, 0")
    A(f"    s_mov_b32 s50, {first}")
    A(f"    s_mov_b32 s51, {0x400000:#x}")
    A("    s_and_b32 s59, s2, 7")
    A("    s_lshr_b32 s54, s2, 4")
    A("    s_and_b32 s54, s54, 8")
    A("    s_or_b32 s59, s59, s54")
    A(f"    s_lshl_b32 s59, s59, {jsh}")
    A("    s_mov_b32 s30, 0")
    A("    s_mov_b32 s31, 0")
    A("    s_mov_b32 s52, 33")
    A("    v_mov_b32 v12, 1")
    A("L_poll:")
    A(f"    s_sleep {sleep}")
    A(f"    ds_read_b32 v{VC+1}, v{VC} offset:{LDS_C}")
    A("    s_waitcnt lgkmcnt(0)")
    A(f"    v_readfirstlane_b32 s53, v{VC+1}")
    A("    s_cmp_ge_u32 s53, s52")
    A("    s_cbranch_scc1 L_soft")
    A("    s_cmp_lt_u32 s53, s50")
    A("    s_cbranch_scc1 L_poll")
    A("    s_memrealtime s[28:29]")
    A(f"    s_sub_u32 s54, s51, {back*2048}")
    A(f"    v_lshl_add_u32 v13, v7, {jsh}, s54")
    if not int(noload):
        A(f"    global_load_dword v14, v13, s[18:19] {lflag}")
    A("    s_waitcnt lgkmcnt(0)")
    A(f"    s_and_b32 s54, s2, {smask:#x}")
    A("    s_cbranch_scc1 L_nosample")
    A("    s_add_u32 s54, s51, s59")
    A("    v_mov_b32 v13, s54")
    A("    v_mov_b32 v15, s28")
    A("    s_mov_b64 exec, 1")
    if not int(noatom):
        A(f"    global_store_dword v13, v15, s[18:19] {sflag}")
    A("    s_mov_b64 exec, -1")
    A("L_nosample:")
    A("    s_add_u32 s51, s51, 2048")
    A("    s_waitcnt vmcnt(0)")
    own = "s31" if back == 1 else "s30"
    A(f"    v_sub_u32 v14, {own}, v14")
    if back == 2:
        A("    s_mov_b32 s30, s31")
    A("    s_mov_b32 s31, s28")
    A("    v_add_u32 v15, 0x400, v14")
    if int(iodref):
        A("    v_xor_b32 v13, s2, v7")
        A("    v_and_b32 v13, 4, v13")
        A("    v_lshl_add_u32 v15, v13, 20, v15")
    A("    v_cmp_gt_u32 vcc, 0x800, v15")
    A("    v_add_u32 v15, 0x10000, v15")
    A("    s_nop 0")
    A("    v_cndmask_b32 v15, 0, v15, vcc")
    A("    s_nop 1")
    A("    v_add_u32_dpp v15, v15, v15 row_shr:1 row_mask:0xf bank_mask:0xf bound_ctrl:0")
    A("    s_nop 1")
    A("    v_add_u32_dpp v15, v15, v15 row_shr:2 row_mask:0xf bank_mask:0xf bound_ctrl:0")
    A("    s_nop 1")
    A("    v_add_u32_dpp v15, v15, v15 row_shr:4 row_mask:0xf bank_mask:0xf bound_ctrl:0")
    A("    s_nop 1")
    A("    v_add_u32_dpp v15, v15, v15 row_shr:8 row_mask:0xf bank_mask:0xf bound_ctrl:0")
    A("    s_nop 1")
    A("    v_readlane_b32 s54, v15, 15")
    A("    s_lshr_b32 s55, s54, 16")
    A("    s_and_b32 s53, s54, 0xffff")
    A("    s_mov_b32 s29, 0")
    for t in thr:
        A(f"    s_mul_i32 s54, s55, {t + 0x400}")
        A("    s_cmp_gt_u32 s53, s54")
        A("    s_addc_u32 s29, s29, 0")
    A("    s_cmp_eq_u32 s55, 0")
    A(f"    s_cselect_b32 s29, {init}, s29")
    A(f"    s_cmp_lt_u32 s50, {first + back*period}")
    A(f"    s_cselect_b32 s29, {init}, s29")
    A(f"    v_mov_b32 v13, s29")
    A(f"    ds_write_b32 v{VC}, v13 offset:{LDS_C+4}")
    A(f"    s_add_u32 s50, s50, {period}")
    A(f"    s_cmp_le_u32 s50, {last}")
    A("    s_cbranch_scc1 L_poll")
    A("    s_mov_b32 s50, 1000")
    A("    s_cmp_eq_u32 s52, 33")
    A("    s_cbranch_scc1 L_poll")
    A("    s_endpgm")
    A("L_soft:")
    for i in range(8):
        A(f"    ds_read_b128 v[{KP+4*i}:{KP+4*i+3}], v3 offset:{LDS_K+1024*i}")
    A("    s_waitcnt vmcnt(0) lgkmcnt(0)")
    for kk in range(4):
        for p in range(4):
            A(f"    v_cvt_pk_bf16_f32 v{KB+4*kk+p}, v{KP+4*(2*p)+kk}, v{KP+4*(2*p+1)+kk}")
    A("    s_nop 1")
    for kk in range(4):
        c = "0" if kk == 0 else f"v[{X}:{X+3}]"
        A(f"    v_mfma_f32_16x16x32_bf16 v[{X}:{X+3}], v[{KB+4*kk}:{KB+4*kk+3}], v[{Q+4*kk}:{Q+4*kk+3}], {c}")
    A("    s_nop 7")

    def rnd():
        A(f"    v_cvt_pk_bf16_f32 v{a}, v{X}, v{X+1}")
        A(f"    v_cvt_pk_bf16_f32 v{b}, v{X+2}, v{X+3}")
        A(f"    v_lshlrev_b32 v{X}, 16, v{a}")
        A(f"    v_and_b32 v{X+1}, s49, v{a}")
        A(f"    v_lshlrev_b32 v{X+2}, 16, v{b}")
        A(f"    v_and_b32 v{X+3}, s49, v{b}")
    rnd()
    for r in range(4):
        A(f"    v_mul_f32 v{X+r}, s46, v{X+r}")
    rnd()

    def xred(op):
        A(f"    v_mov_b32 v{b}, v{a}")
        A("    s_nop 1")
        A(f"    v_permlane16_swap_b32 v{a}, v{b}")
        A(f"    {op} v{a}, v{a}, v{b}")
        A(f"    v_mov_b32 v{b}, v{a}")
        A("    s_nop 1")
        A(f"    v_permlane32_swap_b32 v{a}, v{b}")
        A(f"    {op} v{a}, v{a}, v{b}")
    A(f"    v_max_f32 v{a}, v{X}, v{X+1}")
    A(f"    v_max3_f32 v{a}, v{X+2}, v{X+3}, v{a}")
    xred("v_max_f32")
    for r in range(4):
        A(f"    v_sub_f32 v{X+r}, v{X+r}, v{a}")
    for r in range(4):
        A(f"    v_mul_f32 v{X+r}, s48, v{X+r}")
    for r in range(4):
        A(f"    v_exp_f32 v{X+r}, v{X+r}")
    A("    s_nop 0")
    A(f"    v_add_f32 v{a}, v{X}, v{X+1}")
    A(f"    v_add_f32 v{b}, v{X+2}, v{X+3}")
    A(f"    v_add_f32 v{a}, v{a}, v{b}")
    xred("v_add_f32")
    A(f"    v_rcp_f32 v{a}, v{a}")
    A("    s_nop 0")
    for r in range(4):
        A(f"    v_mul_f32 v{X+r}, v{X+r}, v{a}")
    A(f"    v_cvt_pk_bf16_f32 v{X+6}, v{X}, v{X+1}")
    A(f"    v_cvt_pk_bf16_f32 v{X+7}, v{X+2}, v{X+3}")
    A(f"    ds_write_b64 v4, v[{X+6}:{X+7}] offset:{LDS_P}")
    A("    s_waitcnt lgkmcnt(0)")
    A(f"    ds_write_b32 v{VC}, v12 offset:{LDS_C+8}")
    A("    s_mov_b32 s52, 1000")
    A(f"    s_cmp_le_u32 s50, {last}")
    A("    s_cbranch_scc1 L_poll")
    A("    s_endpgm")

    A('.section .rodata,"a"')
    A(".p2align 6")
    A(f".amdhsa_kernel {NAME}_kernel")
    A(f"  .amdhsa_next_free_vgpr {total}")
    A("  .amdhsa_next_free_sgpr 80")
    A(f"  .amdhsa_accum_offset {acc_off}")
    A("  .amdhsa_group_segment_fixed_size 0")
    A("  .amdhsa_kernarg_size 64")
    A("  .amdhsa_user_sgpr_count 2")
    A("  .amdhsa_user_sgpr_kernarg_segment_ptr 1")
    A("  .amdhsa_system_sgpr_workgroup_id_x 1")
    A("  .amdhsa_float_denorm_mode_32 3")
    A(".end_amdhsa_kernel")
    return "\n".join(L) + "\n"


if __name__ == "__main__":
    out = sys.argv[1]
    kw = dict(a.split("=", 1) for a in sys.argv[2:])
    open(out, "w").write(gen(**kw))
```

```python
import sys
import struct

NAME = "standalone__low_rank_proj_linformer__sampling"

HEADER = """; Kernarg layout for this problem (64 bytes, ptrs only, base s[0:1]):
"""


def f2u(x):
    return struct.unpack("<I", struct.pack("<f", x))[0]


def gen(lo=9, hi=12, d0=10.5, kp=2.5, period=3, first=6, last=60, pred=1, cache="nt", stamp=0, lds=0,
        gpos="13,16", bpos="", pref=1, ctrl=1, ofl="", wsoff=0x400000, fill=0, dlast=0, smask=0x78, xr="", wx=0, cpre=1, sref=1, ki=0.0):
    lo = int(lo); hi = int(hi); d0 = float(d0); kp = float(kp); period = int(period); first = int(first)
    last = int(last); pred = int(pred); stamp = int(stamp); lds = int(lds); pref = int(pref); ctrl = int(ctrl)
    wsoff = int(str(wsoff), 0); fill = int(fill); smask = int(str(smask), 0)
    L = []
    A = L.append
    U = 16
    D = hi
    levels = list(range(lo, hi + 1))
    assert D <= 15
    g0, g1 = [int(x) for x in gpos.split(",")]
    skip = (1 << g0) | (1 << g1)
    bp = [int(x) for x in bpos.split(",")] if bpos else [b for b in range(11, 20) if not (skip >> b) & 1][:2]
    skip |= (1 << bp[0]) | (1 << bp[1])
    ST = 8
    VA = 40
    RING = 72
    EP = RING + 8 * U
    VZ, VD = 216, 217
    VT = 218
    total = 220
    LD = 0
    LP = 8192
    LC = LP + 512
    lds = max(lds, LC + 64)
    cks = list(range(first, last + 1, period)) if ctrl else []
    soft = min([c for c in cks if c >= 33] + [33 if not ctrl else 99])
    bells = sorted(set(cks + [soft] + ([] if ctrl else [8])))
    if bells[-1] == soft:
        bells.append(62)
    dmask = sum(1 << x for x in bells)
    bmask = (1 << 32) | (1 << 63) | 1
    d0fx = int(round((d0 - lo) * 256))
    maxfx = (hi - lo) * 256

    A(HEADER + f"; @launch grid=(256,1,1) block=(128,1,1) lds={lds}")
    A('.amdgcn_target "amdgcn-amd-amdhsa--gfx950"')
    A(".text")
    A(f".globl {NAME}_kernel")
    A(".p2align 8")
    A(f".type {NAME}_kernel,@function")
    A(f"{NAME}_kernel:")
    A("    s_load_dwordx16 s[4:19], s[0:1], 0")
    if stamp:
        A("    s_memrealtime s[60:61]")
        A(f"    v_mov_b32 v{VT}, 0")
    A("    s_cmp_ge_u32 s2, 256")
    A("    s_cbranch_scc1 L_end")
    A("    v_readfirstlane_b32 s36, v0")
    A("    v_and_b32 v0, 63, v0                ; lane")
    A("    v_lshrrev_b32 v6, 4, v0             ; g")
    A("    v_and_b32 v7, 15, v0                ; c")
    A("    v_and_b32 v3, 1, v6")
    A("    v_lshrrev_b32 v4, 1, v6")
    A(f"    v_lshlrev_b32 v1, {g0}, v3")
    A(f"    v_lshl_add_u32 v1, v4, {g1}, v1")
    A("    v_lshrrev_b32 v2, 7, v1")
    A("    v_lshl_add_u32 v1, v7, 4, v1        ; K/V voffset")
    A("    v_lshl_add_u32 v2, v7, 13, v2       ; e/f voffset")
    A("    s_lshl_b32 s43, s2, 20")
    A("    s_cmp_eq_u32 s36, 0")
    A("    s_cselect_b32 s22, 0x200000, 0")
    A("    s_mov_b32 s23, 0x20000")
    A("    s_cselect_b32 s26, 0x20000, 0")
    A("    s_mov_b32 s27, 0x20000")
    A("    s_mov_b32 s57, 0")
    if xr:
        A("    s_mov_b32 s56, 0")
        k = 0
        while k < len(xr):
            if xr[k] == '.':
                k += 1
                continue
            n = 1
            while k + n < len(xr) and xr[k + n] != '.' and int(xr[k + n]) == int(xr[k]) + n:
                n += 1
            A(f"    s_bfe_u32 s58, s2, {int(xr[k]) | (n << 16):#x}")
            A(f"    s_lshl_b32 s58, s58, {11+k}")
            A("    s_or_b32 s56, s56, s58")
            k += n
        A("    s_mov_b32 s39, s56")
    else:
        A("    s_mov_b32 s39, 0")
    A("    s_waitcnt lgkmcnt(0)")
    A("    s_add_u32 s20, s6, s43")
    A("    s_addc_u32 s21, s7, 0")
    A("    s_mov_b64 s[24:25], s[10:11]")
    A("    s_cmp_lg_u32 s36, 0")
    A("    s_cbranch_scc1 L_hpre")

    cf = (" " + cache) if cache else ""

    def issue(u, first=False):
        p = u % 4
        if p == 0:
            blk = (u // 4) % 4
            if blk == 0:
                if not first:
                    A(f"    s_or_b32 s57, s57, {skip:#x}")
                    A("    s_add_u32 s57, s57, 0x800")
                    A(f"    s_and_b32 s57, s57, {~skip & 0xffffffff:#x}")
                    A("    s_cmp_ge_u32 s57, 0x100000")
                    A("    s_cselect_b64 s[20:21], s[44:45], s[20:21]")
                    A("    s_cselect_b64 s[24:25], s[12:13], s[24:25]")
                    A("    s_xor_b32 s39, s57, s56" if xr else "    s_mov_b32 s39, s57")
            else:
                d = 0
                for k in range(2):
                    if ((blk ^ (blk - 1)) >> k) & 1:
                        d |= 1 << bp[k]
                A(f"    s_xor_b32 s39, s39, {d:#x}")
        if p == 3:
            A("    s_bfe_u32 s40, s39, 0xd0007         ; (off >> 7) & 8191")
            r = EP + 4 * ((u // 4) % 4)
            A(f"    buffer_load_dwordx4 v[{r}:{r+3}], v2, s[24:27], s40 offen")
        r = RING + 8 * (u % U)
        for h in range(2):
            o = 512 * p + 256 * h
            off = f" offset:{o}" if o else ""
            A(f"    buffer_load_dwordx4 v[{r+4*h}:{r+4*h+3}], v1, s[20:23], s39 offen{off}{cf}")

    def nwait(s, dm):
        return 2 * (dm - 1) + sum(1 for u in range(s + D - dm + 1, s + D) if u % 4 == 3)

    def step(s, dm):
        A(f"    s_waitcnt vmcnt({nwait(s, dm)})")
        p = s % 4
        r = RING + 8 * (s % U)
        issue(s + D)
        for i in range(8):
            sel = "s38" if (i & 1) else "s37"
            A(f"    v_perm_b32 v{ST+4*i+p}, v{r+4+(i>>1)}, v{r+(i>>1)}, {sel}")
        if s == 13:
            A(f"    ds_read_b32 v{VD}, v{VZ} offset:{LC}")
        if s == 15:
            A("    s_waitcnt lgkmcnt(0)")
            A(f"    v_readfirstlane_b32 s49, v{VD}")
        if p == 3:
            pa = EP + 4 * ((s // 4) % 4)
            for i in range(8):
                t = ST + 4 * i
                c = VA + 4 * i
                A(f"    v_mfma_f32_16x16x32_bf16 v[{c}:{c+3}], v[{pa}:{pa+3}], v[{t}:{t+3}], v[{c}:{c+3}]")

    for u in range(D):
        issue(u, first=(u == 0))
    A("    s_branch L_setup")
    A("L_hpre:")
    if int(cpre):
        nk = (len(levels) * 1752 + 2400) // 1024
        A("    s_getpc_b64 s[58:59]")
        A("L_pc:")
        A("    v_lshlrev_b32 v8, 4, v0")
        for k in range(nk):
            if k and k % 4 == 0:
                A("    v_add_u32 v8, 0x1000, v8")
            A(f"    global_load_dwordx4 v[{RING+32+4*k}:{RING+32+4*k+3}], v8, s[58:59] offset:{1024*(k%4)}")
    if pref:
        A("    s_lshr_b32 s58, s2, 3")
        A("    s_lshl_b32 s58, s58, 12")
        A("    v_lshl_add_u32 v8, v0, 4, s58")
        for k in range(4):
            A(f"    global_load_dwordx4 v[{RING+4*k}:{RING+4*k+3}], v8, s[10:11] offset:{1024*k}")
        for k in range(4):
            A(f"    global_load_dwordx4 v[{RING+16+4*k}:{RING+16+4*k+3}], v8, s[12:13] offset:{1024*k}")
    A("L_setup:")
    A("    s_mov_b32 s37, 0x05040100")
    A("    s_mov_b32 s38, 0x07060302")
    A("    s_add_u32 s44, s8, s43")
    A("    s_addc_u32 s45, s9, 0")
    A("    s_sub_u32 s44, s44, 0x100000")
    A("    s_subb_u32 s45, s45, 0")
    A("    s_lshl_b32 s48, s2, 11")
    A("    s_add_u32 s32, s14, s48")
    A("    s_addc_u32 s33, s15, 0")
    A("    s_mov_b32 s35, 0x20000")
    A("    s_cmp_eq_u32 s36, 0")
    A("    s_cselect_b32 s34, 2048, 0")
    A(f"    s_cselect_b32 s52, {dmask & 0xffffffff:#x}, 0")
    A(f"    s_cselect_b32 s53, {dmask >> 32:#x}, 0")
    A(f"    s_cselect_b32 s54, {bmask & 0xffffffff:#x}, -1")
    A(f"    s_cselect_b32 s55, {bmask >> 32:#x}, -1")
    A("    s_mov_b32 s50, 0                    ; iteration")
    A("    s_mov_b32 s51, 128")
    A("    v_lshlrev_b32 v3, 4, v0             ; lane*16")
    A("    v_lshlrev_b32 v4, 3, v0             ; lane*8")
    A("    v_lshlrev_b32 v5, 10, v6")
    A("    v_lshl_add_u32 v5, v7, 4, v5")
    A(f"    v_mov_b32 v{VZ}, 0")
    A(f"    v_mov_b32 v{VD}, {d0fx}")
    A(f"    ds_write_b32 v{VZ}, v{VD} offset:{LC}")
    for i in range(0, 32, 2):
        A(f"    v_pk_mov_b32 v[{VA+i}:{VA+i+1}], 0, 0")
    if stamp:
        A("    s_memrealtime s[68:69]")
        A(f"    s_waitcnt vmcnt({nwait(0, D)})")
        A("    s_memrealtime s[70:71]")
        A("    s_mov_b32 s74, 0")
        A("    s_waitcnt lgkmcnt(0)")
    if int(wx):
        A("    s_cselect_b64 exec, -1, 0")
    start = fill if fill else int(round(d0))
    order = [start] + sorted([m for m in levels if m != start], key=lambda m: abs(m - d0))
    for idx, m in enumerate(order):
        A(f"L_body_{m}:")
        for s in range(U):
            step(s, m)
        if idx + 1 < len(order):
            A("    s_branch L_next")
    A("L_next:")
    if stamp:
        A("    s_and_b32 s75, s50, 1")
        A("    s_cbranch_scc0 L_notr")
        A("    s_memrealtime s[72:73]")
        A("    s_waitcnt lgkmcnt(0)")
        A("    s_sub_u32 s72, s72, s60")
        A("    s_mov_b32 m0, s74")
        A("    s_add_u32 s74, s74, 1")
        A("    s_nop 4")
        A(f"    v_writelane_b32 v{VT}, s72, m0")
        A("L_notr:")
    A("    s_add_u32 s50, s50, 1")
    A("    s_bitcmp0_b64 s[52:53], s50")
    A("    s_cbranch_scc1 L_nobell")
    A("    s_barrier")
    A("L_nobell:")
    A("    s_bitcmp1_b64 s[54:55], s50")
    A("    s_cbranch_scc1 L_slow")
    A("L_sel:")
    A("    s_and_b32 s51, s51, 255")
    A("    s_add_u32 s51, s51, s49")
    A("L_disp:")
    for m in levels[:-1]:
        A(f"    s_cmp_lt_u32 s51, {256*(m-lo+1)}")
        A(f"    s_cbranch_scc1 L_body_{m}")
    A(f"    s_branch L_body_{hi}")
    A("L_slow:")
    A("    s_cmp_eq_u32 s50, 63")
    A(f"    s_cbranch_scc1 L_body_{hi}")
    A("    s_cmp_eq_u32 s50, 64")
    A("    s_cbranch_scc1 L_final")
    for i in range(8):
        A(f"    ds_write_b128 v3, v[{VA+4*i}:{VA+4*i+3}] offset:{LD+1024*i}")
    for i in range(0, 32, 2):
        A(f"    v_pk_mov_b32 v[{VA+i}:{VA+i+1}], 0, 0")
    A("    s_cmp_eq_u32 s36, 0")
    A("    s_cbranch_scc1 L_sel")
    vis = sum((m - lo) << (4 * i) for i, m in enumerate(order))
    A("    s_lshl_b32 s51, s50, 2")
    A(f"    s_lshr_b32 s51, {vis:#x}, s51")
    A("    s_and_b32 s51, s51, 15")
    A("    s_lshl_b32 s51, s51, 8")
    A(f"    s_cmp_lt_u32 s50, {len(levels)}")
    A("    s_cbranch_scc1 L_disp")
    A("L_final:")
    if stamp:
        A("    s_memrealtime s[62:63]")
        A("    s_waitcnt lgkmcnt(0)")
    PR = ST + 16
    A(f"    ds_read_b64 v[{PR}:{PR+1}], v4 offset:{LP}")
    for i in range(8):
        A(f"    v_cvt_pk_bf16_f32 v{ST+2*i}, v{VA+4*i}, v{VA+4*i+1}")
        A(f"    v_cvt_pk_bf16_f32 v{ST+2*i+1}, v{VA+4*i+2}, v{VA+4*i+3}")
    A("    s_waitcnt lgkmcnt(0)")
    for i in range(8):
        A(f"    v_mfma_f32_16x16x16_bf16 v[{VA+4*i}:{VA+4*i+3}], v[{PR}:{PR+1}], v[{ST+2*i}:{ST+2*i+1}], 0")
    A("    s_nop 1")
    for p in range(4):
        for r in range(4):
            A(f"    v_cvt_pk_bf16_f32 v{ST+4*r+p}, v{VA+4*(2*p)+r}, v{VA+4*(2*p+1)+r}")
    for r in range(4):
        off = f" offset:{256*r}" if r else ""
        A(f"    buffer_store_dwordx4 v[{ST+4*r}:{ST+4*r+3}], v5, s[32:35], 0 offen{off}{' ' + ofl if ofl else ''}")
    A("    s_cmp_lg_u32 s36, 0")
    A("    s_cbranch_scc1 L_helper")
    if stamp:
        A("    s_waitcnt vmcnt(0)")
        A("    s_memrealtime s[64:65]")
        A("    s_getreg_b32 s66, hwreg(HW_REG_XCC_ID)")
        A("    s_getreg_b32 s67, hwreg(HW_REG_HW_ID)")
        A("    s_waitcnt lgkmcnt(0)")
        A("    s_lshl_b32 s76, s2, 6")
        for i in range(12):
            A(f"    v_mov_b32 v{8+i}, s{60+i}")
        A("    v_mov_b32 v4, s76")
        A("    s_lshl_b32 s77, s76, 2")
        A("    s_add_u32 s77, s77, 0x200000")
        A("    v_lshl_add_u32 v5, v0, 2, s77")
        A(f"    global_store_dword v5, v{VT}, s[18:19]")
        A("    s_mov_b64 exec, 1")
        A("    global_store_dwordx4 v4, v[8:11], s[18:19]")
        A("    global_store_dwordx4 v4, v[12:15], s[18:19] offset:16")
        A("    global_store_dwordx4 v4, v[16:19], s[18:19] offset:32")
    A("L_end:")
    A("    s_endpgm")

    A("L_helper:")
    A("    s_mov_b64 exec, -1")
    Q = RING
    KP = RING + 16
    KB = RING + 48
    X = RING + 64
    a, b = X + 4, X + 5
    if stamp:
        A("    s_memrealtime s[94:95]")
        A(f"    v_mov_b32 v{VT}, 0")
    A("    s_add_u32 s24, s4, s48")
    A("    s_addc_u32 s25, s5, 0")
    A("    s_mov_b32 s26, 2048")
    A("    s_mov_b32 s34, 2048")
    A("    v_lshlrev_b32 v9, 8, v7")
    A("    v_lshl_add_u32 v9, v6, 6, v9        ; q voffset = c*256 + g*64")
    A("    s_waitcnt vmcnt(0)")
    for kk in range(4):
        off = f" offset:{16*kk}" if kk else ""
        A(f"    buffer_load_dwordx4 v[{Q+4*kk}:{Q+4*kk+3}], v9, s[24:27], 0 offen{off}")
    A("    v_mov_b32 v13, 0x100000")
    A(f"    buffer_load_dword v16, v{VZ}, s[32:35], 0 offen")
    A("    global_load_dword v17, v13, s[44:45] nt")
    A("    v_lshrrev_b32 v9, 2, v7")
    A("    v_lshlrev_b32 v9, 8, v9")
    A("    v_lshl_add_u32 v9, v6, 6, v9")
    A("    v_and_b32 v11, 3, v7")
    A("    v_lshl_add_u32 v9, v11, 2, v9")
    if ctrl:
        A(f"    s_mov_b32 s50, {first}")
        A(f"    s_mov_b32 s51, {wsoff:#x}")
        A("    s_and_b32 s59, s2, 7")
        A("    s_lshr_b32 s54, s2, 4")
        A("    s_and_b32 s54, s54, 8")
        A("    s_or_b32 s59, s59, s54")
        A("    s_lshl_b32 s59, s59, 7")
        A("    s_mov_b32 s31, 0")
        A("    s_mov_b32 s30, 0")
        A("    v_mov_b32 v18, 0")
        A(f"    s_mov_b32 s46, {f2u(kp * 256 / 100):#x}")
        A(f"    s_mov_b32 s47, {f2u(float(d0fx)):#x}")
        A("    v_mov_b32 v20, s47")
        A("L_meet:")
        A("    s_waitcnt lgkmcnt(0)")
        A("    s_barrier")
        A("    s_memrealtime s[28:29]")
        if int(sref):
            nref = 256 >> bin(smask).count("1")
            A("    s_add_u32 s62, s18, s51")
            A("    s_addc_u32 s63, s19, 0")
            A("    s_waitcnt lgkmcnt(0)")
            for j in range(nref):
                A(f"    s_load_dword s{76+j}, s[62:63], {128*j - 2048}")
            A(f"    s_and_b32 s54, s2, {smask:#x}")
            A("    s_cbranch_scc1 L_noref")
            A("    v_mov_b32 v13, s59")
            A("    v_mov_b32 v15, s28")
            A("    s_mov_b64 exec, 1")
            A("    global_store_dword v13, v15, s[62:63] sc1")
            A("    s_mov_b64 exec, -1")
            A("L_noref:")
            A("    s_add_u32 s51, s51, 2048")
            A("    s_sub_u32 s29, s28, s31")
            A("    s_sub_u32 s55, s29, s30")
            A("    s_mov_b32 s30, s29")
            A("    s_add_u32 s29, s31, 0x400")
            A("    s_mov_b32 s31, s28")
            A("    s_mov_b32 s54, 0")
            A("    s_waitcnt lgkmcnt(0)")
            for j in range(nref):
                A(f"    s_sub_u32 s{76+j}, s29, s{76+j}")
                A(f"    s_add_u32 s53, s{76+j}, 0x10000")
                A(f"    s_cmp_lt_u32 s{76+j}, 0x800")
                A("    s_cselect_b32 s53, s53, 0")
                A("    s_add_u32 s54, s54, s53")
        else:
            A("    s_sub_u32 s54, s51, 2048")
            A("    v_lshl_add_u32 v13, v7, 7, s54")
            A("    global_load_dword v14, v13, s[18:19] sc1")
            A("    s_waitcnt lgkmcnt(0)")
            A(f"    s_and_b32 s54, s2, {smask:#x}")
            A("    s_cbranch_scc1 L_noref")
            A("    s_add_u32 s54, s51, s59")
            A("    v_mov_b32 v13, s54")
            A("    v_mov_b32 v15, s28")
            A("    s_mov_b64 exec, 1")
            A("    global_store_dword v13, v15, s[18:19] sc1")
            A("    s_mov_b64 exec, -1")
            A("L_noref:")
            A("    s_add_u32 s51, s51, 2048")
            A("    s_sub_u32 s29, s28, s31")
            A("    s_sub_u32 s55, s29, s30")
            A("    s_mov_b32 s30, s29")
            A("    s_waitcnt vmcnt(0)")
            A("    v_sub_u32 v14, s31, v14")
            A("    s_mov_b32 s31, s28")
            A("    v_add_u32 v15, 0x400, v14")
            A("    v_cmp_gt_u32 vcc, 0x800, v15")
            A("    v_add_u32 v15, 0x10000, v15")
            A("    s_nop 0")
            A("    v_cndmask_b32 v15, 0, v15, vcc")
            for sh in (1, 2, 4, 8):
                A("    s_nop 1")
                A(f"    v_add_u32_dpp v15, v15, v15 row_shr:{sh} row_mask:0xf bank_mask:0xf bound_ctrl:0")
            A("    s_nop 1")
            A("    v_readlane_b32 s54, v15, 15")
        A("    s_lshr_b32 s53, s54, 16")
        A("    s_cbranch_scc0 L_keep")
        A(f"    s_cmp_eq_u32 s50, {first}")
        A("    s_cbranch_scc1 L_keep")
        A("    s_and_b32 s54, s54, 0xffff")
        A("    v_cvt_f32_u32 v14, s53")
        A("    v_cvt_f32_u32 v15, s54")
        A("    v_rcp_f32 v14, v14")
        A("    v_cvt_f32_i32 v19, s55")
        A("    v_mul_f32 v14, v14, v15")
        A("    v_add_f32 v14, 0xc4800000, v14")
        if pred:
            A("    v_sub_f32 v15, v14, v18")
            A("    v_add_f32 v15, v15, v19")
            A(f"    s_cmp_le_u32 s50, {first + period}")
            A("    s_cselect_b32 s54, 0, 1.0")
            A("    v_mov_b32 v18, v14")
            A("    v_fma_f32 v14, v15, s54, v14")
        if float(ki):
            A(f"    v_mov_b32 v15, {f2u(float(ki) * 256 / 100):#x}")
            A("    v_fma_f32 v20, v14, v15, v20")
            A(f"    v_max_f32 v20, {f2u(float(d0fx - 256)):#x}, v20")
            A(f"    v_min_f32 v20, {f2u(float(d0fx + 256)):#x}, v20")
            A("    v_fma_f32 v14, v14, s46, v20")
        else:
            A("    v_mov_b32 v15, s47")
            A("    v_fma_f32 v14, v14, s46, v15")
        A("    v_cvt_i32_f32 v14, v14")
        A("    v_max_i32 v14, 0, v14")
        A(f"    v_min_i32 v14, {maxfx}, v14")
        A(f"    ds_write_b32 v{VZ}, v14 offset:{LC}")
        if stamp:
            A("    s_mov_b32 m0, s50")
            A("    v_readfirstlane_b32 s54, v14")
            A("    s_nop 4")
            A(f"    v_writelane_b32 v{VT}, s54, m0")
        A("L_keep:")
        A(f"    s_cmp_eq_u32 s50, {soft}")
        A("    s_cbranch_scc1 L_soft")
        A("L_back:")
        A(f"    s_add_u32 s50, s50, {period}")
        A(f"    s_cmp_le_u32 s50, {cks[-1]}")
        A("    s_cbranch_scc1 L_meet")
        if bells[-1] != cks[-1]:
            A("    s_waitcnt lgkmcnt(0)")
            A("    s_barrier")
        if stamp:
            A("    s_sub_u32 s94, s94, s60")
            A(f"    v_writelane_b32 v{VT}, s94, 0")
            A("    s_lshl_b32 s64, s2, 8")
            A("    s_add_u32 s64, s64, 0x300000")
            A("    v_lshl_add_u32 v24, v0, 2, s64")
            A(f"    global_store_dword v24, v{VT}, s[18:19]")
        A("    s_endpgm")
        A("L_soft:")
    else:
        A("    s_waitcnt vmcnt(0) lgkmcnt(0)")
        A("    s_barrier")
        A("    s_barrier")
    for kk in range(4):
        for i in range(8):
            A(f"    ds_read_b32 v{KP+8*kk+i}, v9 offset:{LD+1024*i+16*kk}")
        A("    s_waitcnt lgkmcnt(0)")
    A("    s_waitcnt vmcnt(0)")
    A("    s_mov_b32 s56, 0x3db504f3          ; 128^-0.5")
    A("    s_mov_b32 s57, 0x3fb8aa3b          ; log2(e)")
    A("    s_mov_b32 s58, 0xffff0000")
    for kk in range(4):
        for p in range(4):
            A(f"    v_cvt_pk_bf16_f32 v{KB+4*kk+p}, v{KP+8*kk+2*p}, v{KP+8*kk+2*p+1}")
    A("    s_nop 1")
    for kk in range(4):
        c = "0" if kk == 0 else f"v[{X}:{X+3}]"
        A(f"    v_mfma_f32_16x16x32_bf16 v[{X}:{X+3}], v[{KB+4*kk}:{KB+4*kk+3}], v[{Q+4*kk}:{Q+4*kk+3}], {c}")
    A("    s_nop 7")

    def rnd():
        A(f"    v_cvt_pk_bf16_f32 v{a}, v{X}, v{X+1}")
        A(f"    v_cvt_pk_bf16_f32 v{b}, v{X+2}, v{X+3}")
        A(f"    v_lshlrev_b32 v{X}, 16, v{a}")
        A(f"    v_and_b32 v{X+1}, s58, v{a}")
        A(f"    v_lshlrev_b32 v{X+2}, 16, v{b}")
        A(f"    v_and_b32 v{X+3}, s58, v{b}")
    rnd()
    for r in range(4):
        A(f"    v_mul_f32 v{X+r}, s56, v{X+r}")
    rnd()

    def xred(op):
        A(f"    v_mov_b32 v{b}, v{a}")
        A("    s_nop 1")
        A(f"    v_permlane16_swap_b32 v{a}, v{b}")
        A(f"    {op} v{a}, v{a}, v{b}")
        A(f"    v_mov_b32 v{b}, v{a}")
        A("    s_nop 1")
        A(f"    v_permlane32_swap_b32 v{a}, v{b}")
        A(f"    {op} v{a}, v{a}, v{b}")
    A(f"    v_max_f32 v{a}, v{X}, v{X+1}")
    A(f"    v_max3_f32 v{a}, v{X+2}, v{X+3}, v{a}")
    xred("v_max_f32")
    for r in range(4):
        A(f"    v_sub_f32 v{X+r}, v{X+r}, v{a}")
    for r in range(4):
        A(f"    v_mul_f32 v{X+r}, s57, v{X+r}")
    for r in range(4):
        A(f"    v_exp_f32 v{X+r}, v{X+r}")
    A("    s_nop 0")
    A(f"    v_add_f32 v{a}, v{X}, v{X+1}")
    A(f"    v_add_f32 v{b}, v{X+2}, v{X+3}")
    A(f"    v_add_f32 v{a}, v{a}, v{b}")
    xred("v_add_f32")
    A(f"    v_rcp_f32 v{a}, v{a}")
    A("    s_nop 0")
    for r in range(4):
        A(f"    v_mul_f32 v{X+r}, v{X+r}, v{a}")
    A(f"    v_cvt_pk_bf16_f32 v{X+6}, v{X}, v{X+1}")
    A(f"    v_cvt_pk_bf16_f32 v{X+7}, v{X+2}, v{X+3}")
    A(f"    ds_write_b64 v4, v[{X+6}:{X+7}] offset:{LP}")
    if ctrl:
        A("    s_branch L_back")
    else:
        A("    s_waitcnt lgkmcnt(0)")
        A("    s_barrier")
        A("    s_endpgm")

    A("L_codeend:")
    if int(cpre):
        A(f".if (L_codeend - L_pc) < {nk*1024}")
        A('.error "code prefetch runs past the code"')
        A(".endif")
    A('.section .rodata,"a"')
    A(".p2align 6")
    A(f".amdhsa_kernel {NAME}_kernel")
    A(f"  .amdhsa_next_free_vgpr {total}")
    A("  .amdhsa_next_free_sgpr 96")
    A(f"  .amdhsa_accum_offset {total}")
    A("  .amdhsa_group_segment_fixed_size 0")
    A("  .amdhsa_kernarg_size 64")
    A("  .amdhsa_user_sgpr_count 2")
    A("  .amdhsa_user_sgpr_kernarg_segment_ptr 1")
    A("  .amdhsa_system_sgpr_workgroup_id_x 1")
    A("  .amdhsa_float_denorm_mode_32 3")
    A(".end_amdhsa_kernel")
    return "\n".join(L) + "\n"


if __name__ == "__main__":
    out = sys.argv[1]
    kw = dict(a.split("=", 1) for a in sys.argv[2:])
    open(out, "w").write(gen(**kw))
```

```python
import sys
import struct

NAME = "standalone__low_rank_proj_linformer__sampling"

HEADER = """; Kernarg layout for this problem (64 bytes, ptrs only, base s[0:1]):
"""


def f2u(x):
    return struct.unpack("<I", struct.pack("<f", x))[0]


def gen(lo=9, hi=12, d0=10.5, kp=2.5, period=3, first=6, last=60, pred=1, cache="nt", stamp=0, lds=0,
        gpos="13,16", bpos="", pref=1, ctrl=1, ofl="", wsoff=0x401000, fill=0, dlast=0, smask=0x78, xr="", wx=0, cpre=1, sref=1, ki=0.0, top=0, boost=63, lastbody=0, quad=0, qoff=3, beta=0.0, local=0, iodref=0, early=1, spre=1, tboost=0, dinit=0, btrace=0, nowalk=0, fpos=0, lay=1, csplit=0, epos=0, w3=0, stouch=1, tmask=7, qfl="", qpre=0, w3d=0, lopt=0, hyb=-1, lg="11,15", lxr="......01", ld0=0):
    lo = int(lo); hi = int(hi); d0 = float(d0); kp = float(kp); period = int(period); first = int(first)
    last = int(last); pred = int(pred); stamp = int(stamp); lds = int(lds); pref = int(pref); ctrl = int(ctrl)
    wsoff = int(str(wsoff), 0); fill = int(fill); smask = int(str(smask), 0)
    L = []
    A = L.append
    U = 16
    top = int(top) or hi
    boost = int(boost); lastbody = int(lastbody)
    D = top
    levels = list(range(lo, hi + 1))
    extra = [top] if top > hi else []
    assert D <= 15
    g0, g1 = [int(x) for x in gpos.split(",")]
    local = int(local)
    REG = 0x200000 if local else 0x100000
    skip = (1 << g0) | (1 << g1) | ((1 << 13) if local else 0)
    bp = [int(x) for x in bpos.split(",")] if bpos else [b for b in range(11, 20) if not (skip >> b) & 1][:2]
    skip |= (1 << bp[0]) | (1 << bp[1])
    ST = 8
    VA = 40
    RING = 72
    EP = RING + 8 * U
    VZ, VD = 216, 217
    VT = 218
    total = 252 if int(lopt) else 240
    LD = 0
    LP = 8192
    LC = LP + 512
    lds = max(lds, LC + 64)
    cks = list(range(first, last + 1, period)) if ctrl else []
    soft = min([c for c in cks if c >= 33] + [33 if not ctrl else 99])
    bells = sorted(set(cks + [soft] + ([] if ctrl else [8])))
    if bells[-1] == soft:
        bells.append(62)
    dmask = sum(1 << x for x in bells)
    bmask = (1 << 32) | 1 | sum(1 << x for x in range(boost, 64))
    if int(tboost):
        bmask |= 1 << 31
    dinit = float(dinit) or d0
    d0fx = int(round((d0 - lo) * 256))
    maxfx = (hi - lo) * 256

    A(HEADER + f"; @launch grid=(256,1,1) block=({192 if int(w3) else 128},1,1) lds={lds}")
    A('.amdgcn_target "amdgcn-amd-amdhsa--gfx950"')
    A(".text")
    A(f".globl {NAME}_kernel")
    A(".p2align 8")
    A(f".type {NAME}_kernel,@function")
    A(f"{NAME}_kernel:")
    A("    s_load_dwordx16 s[4:19], s[0:1], 0")
    if stamp:
        A("    s_memrealtime s[60:61]")
        A(f"    v_mov_b32 v{VT}, 0")
    A("    s_cmp_ge_u32 s2, 256")
    A("    s_cbranch_scc1 L_end")
    A("    v_readfirstlane_b32 s36, v0")
    A("    v_and_b32 v0, 63, v0                ; lane")
    A("    v_lshrrev_b32 v6, 4, v0             ; g")
    A("    v_and_b32 v7, 15, v0                ; c")
    A("    v_and_b32 v3, 1, v6")
    A("    v_lshrrev_b32 v4, 1, v6")
    A(f"    v_lshlrev_b32 v1, {g0}, v3")
    A(f"    v_lshl_add_u32 v1, v4, {g1}, v1")
    A("    v_lshrrev_b32 v2, 7, v1")
    A("    v_lshl_add_u32 v1, v7, 4, v1        ; K/V voffset")
    A("    v_lshl_add_u32 v2, v7, 13, v2       ; e/f voffset")
    if local:
        A("    s_lshr_b32 s80, s2, 3")
        A("    s_and_b32 s81, s2, 3")
        A("    s_lshl2_add_u32 s80, s80, s81       ; pair")
        A("    s_lshl_b32 s43, s80, 21")
        A("    s_lshl_b32 s82, s80, 1")
        A("    s_and_b32 s81, s82, 0xfffffffc")
        A("    s_add_u32 s81, s81, 0x100000")
        A("    s_getreg_b32 s84, hwreg(HW_REG_XCC_ID)")
        A("    s_lshr_b32 s84, s84, 2")
        A("    s_and_b32 s82, s82, 3")
        A("    s_lshl_b32 s82, s82, 3")
    else:
        A("    s_lshl_b32 s43, s2, 20")
    A("    s_cmp_eq_u32 s36, 0")
    A(f"    s_cselect_b32 s22, {2*REG:#x}, 0")
    A("    s_mov_b32 s23, 0x20000")
    A("    s_cselect_b32 s26, 0x20000, 0")
    A("    s_mov_b32 s27, 0x20000")
    A("    s_mov_b32 s57, 0")
    if xr:
        A("    s_mov_b32 s56, 0")
        k = 0
        while k < len(xr):
            if xr[k] == '.':
                k += 1
                continue
            n = 1
            while k + n < len(xr) and xr[k + n] != '.' and int(xr[k + n]) == int(xr[k]) + n:
                n += 1
            A(f"    s_bfe_u32 s58, s2, {int(xr[k]) | (n << 16):#x}")
            A(f"    s_lshl_b32 s58, s58, {11+k}")
            A("    s_or_b32 s56, s56, s58")
            k += n
        A("    s_mov_b32 s39, s56")
    else:
        A("    s_mov_b32 s39, 0")
    A("    s_waitcnt lgkmcnt(0)")
    if local:
        A("    s_load_dword s83, s[18:19], s81")
        A("    s_add_u32 s81, s81, 256")
        A("    s_load_dword s85, s[18:19], s81")
        A("    s_waitcnt lgkmcnt(0)")
        for r in (83, 85):
            A(f"    s_lshr_b32 s{r}, s{r}, s82")
            A(f"    s_xor_b32 s{r}, s{r}, s84")
            A(f"    s_and_b32 s{r}, s{r}, 1")
            A(f"    s_lshl_b32 s{r}, s{r}, 13")
            A(f"    s_xor_b32 s{r}, s{r}, s56")
        A("    s_mov_b32 s56, s83")
        A("    s_mov_b32 s39, s83")
    if int(hyb) >= 0:
        l0, l1 = [int(x) for x in lg.split(",")]
        lskip = (1 << l0) | (1 << l1) | (1 << 13)
        lbp = [b for b in range(11, 20) if not (lskip >> b) & 1][:2]
        lskip |= (1 << lbp[0]) | (1 << lbp[1])
        A(f"    s_mov_b32 s86, {skip:#x}")
        A("    s_mov_b32 s87, 0x100000")
        A(f"    s_mov_b32 s88, {1 << bp[0]:#x}")
        A(f"    s_mov_b32 s89, {(1 << bp[0]) | (1 << bp[1]):#x}")
        A("    s_mov_b32 s85, s56")
        A("    s_mov_b32 s93, 0")
        A("    s_lshr_b32 s80, s2, 3")
        A(f"    s_and_b32 s81, s80, {int(hyb)}")
        A(f"    s_cmp_lg_u32 s81, {int(hyb)}")
        A("    s_cbranch_scc1 L_nohyb")
        A("    s_mov_b32 s93, 1")
        A("    s_and_b32 s81, s2, 3")
        A("    s_lshl2_add_u32 s80, s80, s81       ; pair")
        A("    s_lshl_b32 s43, s80, 21")
        A("    s_lshl_b32 s82, s80, 1")
        A("    s_and_b32 s81, s82, 0xfffffffc")
        A("    s_add_u32 s81, s81, 0x100000")
        A("    s_load_dword s83, s[18:19], s81")
        A("    s_add_u32 s81, s81, 256")
        A("    s_load_dword s85, s[18:19], s81")
        A("    s_getreg_b32 s84, hwreg(HW_REG_XCC_ID)")
        A("    s_lshr_b32 s84, s84, 2")
        A("    s_and_b32 s82, s82, 3")
        A("    s_lshl_b32 s82, s82, 3")
        A(f"    s_mov_b32 s86, {lskip:#x}")
        A("    s_mov_b32 s87, 0x200000")
        A(f"    s_mov_b32 s88, {1 << lbp[0]:#x}")
        A(f"    s_mov_b32 s89, {(1 << lbp[0]) | (1 << lbp[1]):#x}")
        A("    s_lshl_b32 s22, s22, 1")
        A("    s_and_b32 s56, s2, 3")
        A("    s_lshl_b32 s56, s56, 17")
        A(f"    v_lshlrev_b32 v1, {l0}, v3")
        A(f"    v_lshl_add_u32 v1, v4, {l1}, v1")
        A("    v_lshrrev_b32 v2, 7, v1")
        A("    v_lshl_add_u32 v1, v7, 4, v1")
        A("    v_lshl_add_u32 v2, v7, 13, v2")
        A("    s_waitcnt lgkmcnt(0)")
        for r in (83, 85):
            A(f"    s_lshr_b32 s{r}, s{r}, s82")
            A(f"    s_xor_b32 s{r}, s{r}, s84")
            A(f"    s_and_b32 s{r}, s{r}, 1")
            A(f"    s_lshl_b32 s{r}, s{r}, 13")
            A(f"    s_xor_b32 s{r}, s{r}, s56")
        A("    s_mov_b32 s56, s83")
        A("    s_mov_b32 s39, s83")
        A("L_nohyb:")
    A("    s_add_u32 s20, s6, s43")
    A("    s_addc_u32 s21, s7, 0")
    A("    s_mov_b64 s[24:25], s[10:11]")
    A("    s_cmp_lg_u32 s36, 0")
    A("    s_cbranch_scc1 L_hpre")

    cf = (" " + cache) if cache else ""
    hyb = int(hyb)

    def issue(u, first=False):
        p = u % 4
        if p == 0:
            blk = (u // 4) % 4
            if blk == 0:
                if not first and hyb >= 0:
                    A("    s_or_b32 s57, s57, s86")
                    A("    s_add_u32 s57, s57, 0x800")
                    A("    s_andn2_b32 s57, s57, s86")
                    A("    s_cmp_ge_u32 s57, s87")
                    A("    s_cselect_b64 s[20:21], s[44:45], s[20:21]")
                    A("    s_cselect_b64 s[24:25], s[12:13], s[24:25]")
                    A("    s_cselect_b32 s56, s85, s56")
                    A("    s_xor_b32 s39, s57, s56")
                elif not first:
                    A(f"    s_or_b32 s57, s57, {skip:#x}")
                    A("    s_add_u32 s57, s57, 0x800")
                    A(f"    s_and_b32 s57, s57, {~skip & 0xffffffff:#x}")
                    A(f"    s_cmp_ge_u32 s57, {REG:#x}")
                    A("    s_cselect_b64 s[20:21], s[44:45], s[20:21]")
                    A("    s_cselect_b64 s[24:25], s[12:13], s[24:25]")
                    if local:
                        A("    s_cselect_b32 s56, s85, s56")
                    A("    s_xor_b32 s39, s57, s56" if xr else "    s_mov_b32 s39, s57")
            else:
                d = 0
                for k in range(2):
                    if ((blk ^ (blk - 1)) >> k) & 1:
                        d |= 1 << bp[k]
                A(f"    s_xor_b32 s39, s39, {d:#x}" if hyb < 0 else f"    s_xor_b32 s39, s39, s{89 if blk == 2 else 88}")
        if p == 3:
            A("    s_bfe_u32 s40, s39, 0xd0007         ; (off >> 7) & 8191")
            r = EP + 4 * ((u // 4) % 4)
            A(f"    buffer_load_dwordx4 v[{r}:{r+3}], v2, s[24:27], s40 offen")
        r = RING + 8 * (u % U)
        for h in range(2):
            o = 512 * p + 256 * h
            off = f" offset:{o}" if o else ""
            A(f"    buffer_load_dwordx4 v[{r+4*h}:{r+4*h+3}], v1, s[20:23], s39 offen{off}{cf}")

    quad = int(quad); qoff = int(qoff)

    def issue2(u, first=False):
        n0 = len(L)
        issue(u, first)
        issue(u + 1)
        if quad == 2:
            blk = L[n0:]
            ld = [x for x in blk if ", v1, s[20:23]" in x]
            rest = [x for x in blk if ", v1, s[20:23]" not in x]
            L[n0:] = rest + [ld[0], ld[2], ld[1], ld[3]]

    def seq(lastpair):
        out = []
        u = lastpair - 40 - ((lastpair - 40 + 1) % 2 if quad else 0)
        u -= u % 4
        while u <= lastpair:
            if quad == 2:
                if (u + 1) % 4 == 3:
                    out.append((u + 1, 'e'))
                out += [(u, 'd'), (u + 1, 'd'), (u, 'd'), (u + 1, 'd')]
                u += 2
            else:
                if u % 4 == 3:
                    out.append((u, 'e'))
                out += [(u, 'd'), (u, 'd')]
                u += 1
        return out

    def count(lastpair, need, maxdata=None):
        sq = seq(lastpair)
        n = nd = 0
        for (u, k) in reversed(sq):
            if u <= need:
                break
            if k == 'd':
                if maxdata is not None and nd >= maxdata:
                    break
                nd += 1
            n += 1
        return n

    def nwait(s, dm):
        if not quad:
            return 2 * (dm - 1) + sum(1 for u in range(s + D - dm + 1, s + D) if u % 4 == 3)
        if (s + D) % 2 == 0:
            return count(s + D - 1, s, 2 * dm - qoff)
        return count(s + D, s)

    def step(s, dm):
        A(f"    s_waitcnt vmcnt({nwait(s, dm)})")
        p = s % 4
        r = RING + 8 * (s % U)
        if not quad:
            issue(s + D)
        elif (s + D) % 2 == 0:
            issue2(s + D)
        for i in range(8):
            sel = "s38" if (i & 1) else "s37"
            A(f"    v_perm_b32 v{ST+4*i+p}, v{r+4+(i>>1)}, v{r+(i>>1)}, {sel}")
        if int(btrace) and s % int(btrace) == int(btrace) - 1:
            A("    s_memrealtime s[72:73]")
            A("    s_min_u32 s75, s74, 63")
            A("    s_mov_b32 m0, s75")
            A("    s_add_u32 s74, s74, 1")
            A("    s_waitcnt lgkmcnt(0)")
            A("    s_sub_u32 s72, s72, s60")
            A(f"    v_writelane_b32 v{VT}, s72, m0")
        if s == 13:
            A(f"    ds_read_b32 v{VD}, v{VZ} offset:{LC}")
        if s == 15:
            A("    s_waitcnt lgkmcnt(0)")
            A(f"    v_readfirstlane_b32 s49, v{VD}")
        if p == 3:
            pa = EP + 4 * ((s // 4) % 4)
            for i in range(8):
                t = ST + 4 * i
                c = VA + 4 * i
                A(f"    v_mfma_f32_16x16x32_bf16 v[{c}:{c+3}], v[{pa}:{pa+3}], v[{t}:{t+3}], v[{c}:{c+3}]")

    assert not quad or D % 2 == 0
    for u in range(0, D, 2 if quad else 1):
        (issue2 if quad else issue)(u, first=(u == 0))
    A("    s_branch L_setup")
    A("L_hpre:")
    if int(w3) and not int(w3d):
        A("    s_cmp_eq_u32 s36, 128")
        A("    s_cbranch_scc1 L_fetch")
    if int(w3d):
        A("    s_cmp_eq_u32 s36, 64")
        A("    s_cbranch_scc1 L_setup")
    QR = 220
    nk = min(int(cpre) if int(cpre) > 1 else 99, (len(levels + extra) * 1752 + 2400 + 1400 * lastbody) // 1024)
    if int(early):
        A("    s_lshl_b32 s48, s2, 11")
        A("    v_mov_b32 v8, s43")
        A("    v_mov_b32 v9, s48")
        A(f"    v_mov_b32 v10, {wsoff:#x}")
        A("    s_mov_b64 exec, 1")
        A("    global_load_dword v11, v8, s[8:9] nt")
        A("    global_load_dword v12, v9, s[14:15]")
        A("    global_load_dword v13, v0, s[12:13]")
        if ctrl:
            A("    global_load_dword v14, v10, s[18:19] offset:-128")
        A("    s_mov_b64 exec, -1")
        A("    s_add_u32 s28, s4, s48")
        A("    s_addc_u32 s29, s5, 0")
        A("    s_mov_b32 s30, 2048")
        A("    s_mov_b32 s31, 0x20000")
        A("    v_lshlrev_b32 v9, 8, v7")
        A("    v_lshl_add_u32 v9, v6, 6, v9        ; q voffset = c*256 + g*64")
        for kk in range(4):
            off = f" offset:{16*kk}" if kk else ""
            A(f"    buffer_load_dwordx4 v[{QR+4*kk}:{QR+4*kk+3}], v9, s[28:31], 0 offen{off}")
    if int(spre):
        A("    s_getpc_b64 s[58:59]")
        A("L_pc:")
        A("    s_lshr_b32 s62, s2, 3")
        A(f"    s_mul_i32 s63, s62, {nk*32}")
        for k in range((nk * 32 + 127) // 128):
            A(f"    s_load_dword s64, s[58:59], s63 offset:{128*k}")
        A("    s_lshl_b32 s62, s62, 12")
        A("    s_add_u32 s63, s62, 4096")
        A("L_spre:")
        for k in range(4):
            A(f"    s_load_dword s64, s[10:11], s62 offset:{128*k}")
        if int(spre) == 1:
            for k in range(4):
                A(f"    s_load_dword s64, s[12:13], s62 offset:{128*k}")
        A("    s_add_u32 s62, s62, 512")
        A("    s_cmp_lt_u32 s62, s63")
        A("    s_cbranch_scc1 L_spre")
    else:
        if int(cpre):
            A("    s_getpc_b64 s[58:59]")
            A("L_pc:")
            A("    v_lshlrev_b32 v8, 4, v0")
            if int(csplit):
                A("    s_lshr_b32 s62, s2, 3")
                A(f"    s_mul_i32 s62, s62, {nk}")
                A("    s_lshr_b32 s62, s62, 5")
                A("    s_lshl_b32 s62, s62, 10")
                A("    v_add_u32 v8, s62, v8")
                A(f"    global_load_dwordx4 v[{RING+32}:{RING+35}], v8, s[58:59]")
                if int(w3d):
                    A("    s_waitcnt vmcnt(0)")
                    A("    s_branch L_fetch")
            for k in range(0 if int(csplit) else nk):
                if k and k % 4 == 0:
                    A("    v_add_u32 v8, 0x1000, v8")
                A(f"    global_load_dwordx4 v[{RING+32+4*k}:{RING+32+4*k+3}], v8, s[58:59] offset:{1024*(k%4)}")
        if pref:
            A("    s_lshr_b32 s58, s2, 3")
            A("    s_lshl_b32 s58, s58, 12")
            A("    v_lshl_add_u32 v8, v0, 4, s58")
            for k in range(4 if not int(epos) else 0):
                A(f"    global_load_dwordx4 v[{RING+4*k}:{RING+4*k+3}], v8, s[10:11] offset:{1024*k}")
            for k in range(4 if not int(fpos) else 0):
                A(f"    global_load_dwordx4 v[{RING+16+4*k}:{RING+16+4*k+3}], v8, s[12:13] offset:{1024*k}")
    A("L_setup:")
    A("    s_mov_b32 s37, 0x05040100")
    A("    s_mov_b32 s38, 0x07060302")
    A("    s_add_u32 s44, s8, s43")
    A("    s_addc_u32 s45, s9, 0")
    A(f"    s_sub_u32 s44, s44, {REG:#x}" if hyb < 0 else "    s_sub_u32 s44, s44, s87")
    A("    s_subb_u32 s45, s45, 0")
    A("    s_lshl_b32 s48, s2, 11")
    A("    s_add_u32 s32, s14, s48")
    A("    s_addc_u32 s33, s15, 0")
    A("    s_mov_b32 s35, 0x20000")
    A("    s_cmp_eq_u32 s36, 0")
    A("    s_cselect_b32 s34, 2048, 0")
    A(f"    s_cselect_b32 s52, {dmask & 0xffffffff:#x}, 0")
    A(f"    s_cselect_b32 s53, {dmask >> 32:#x}, 0")
    A(f"    s_cselect_b32 s54, {bmask & 0xffffffff:#x}, -1")
    A(f"    s_cselect_b32 s55, {bmask >> 32:#x}, -1")
    A("    s_mov_b32 s50, 0                    ; iteration")
    A("    s_mov_b32 s51, 128")
    A("    v_lshlrev_b32 v3, 4, v0             ; lane*16")
    A("    v_lshlrev_b32 v4, 3, v0             ; lane*8")
    A("    v_lshlrev_b32 v5, 10, v6")
    A("    v_lshl_add_u32 v5, v7, 4, v5")
    A(f"    v_mov_b32 v{VZ}, 0")
    A(f"    v_mov_b32 v{VD}, {int(round((dinit - lo) * 256))}")
    A(f"    ds_write_b32 v{VZ}, v{VD} offset:{LC}")
    for i in range(0, 32, 2):
        A(f"    v_pk_mov_b32 v[{VA+i}:{VA+i+1}], 0, 0")
    if stamp:
        A("    s_memrealtime s[68:69]")
        A(f"    s_waitcnt vmcnt({nwait(0, D)})")
        A("    s_memrealtime s[70:71]")
        A("    s_mov_b32 s74, 0")
        A("    s_waitcnt lgkmcnt(0)")
    if int(nowalk):
        A("    s_cbranch_scc0 L_helper")
    if int(wx):
        A("    s_cselect_b64 exec, -1, 0")
    start = fill if fill else int(round(d0))
    order = [start] + sorted([m for m in levels + extra if m != start], key=lambda m: abs(m - d0))
    def body(m, br):
        A(f"L_body_{m}:")
        for s in range(U):
            step(s, m)
        if br:
            A("    s_branch L_next")
    for idx, m in enumerate(order[:1] if int(lay) else order):
        body(m, not int(lay) and idx + 1 < len(order))
    A("L_next:")
    if stamp and not int(btrace):
        A("    s_and_b32 s75, s50, 1")
        A("    s_cbranch_scc0 L_notr")
        A("    s_memrealtime s[72:73]")
        A("    s_waitcnt lgkmcnt(0)")
        A("    s_sub_u32 s72, s72, s60")
        A("    s_mov_b32 m0, s74")
        A("    s_add_u32 s74, s74, 1")
        A("    s_nop 4")
        A(f"    v_writelane_b32 v{VT}, s72, m0")
        A("L_notr:")
    A("    s_add_u32 s50, s50, 1")
    A("    s_bitcmp0_b64 s[52:53], s50")
    A("    s_cbranch_scc1 L_nobell")
    A("    s_barrier")
    A("L_nobell:")
    A("    s_bitcmp1_b64 s[54:55], s50")
    A("    s_cbranch_scc1 L_slow")
    A("L_sel:")
    A("    s_and_b32 s51, s51, 255")
    A("    s_add_u32 s51, s51, s49")
    A("L_disp:")
    for m in levels[:-1]:
        A(f"    s_cmp_lt_u32 s51, {256*(m-lo+1)}")
        A(f"    s_cbranch_scc1 L_body_{m}")
    if extra:
        A(f"    s_cmp_lt_u32 s51, {256*(hi-lo+1)}")
        A(f"    s_cbranch_scc1 L_body_{hi}")
    A(f"    s_branch L_body_{top}")
    A("L_slow:")
    A(f"    s_cmp_eq_u32 s50, {63 if lastbody else 64}")
    A("    s_cbranch_scc1 L_final")
    A(f"    s_cmp_ge_u32 s50, {boost}")
    A(f"    s_cbranch_scc1 L_body_{top}")
    if int(tboost):
        A("    s_cmp_eq_u32 s50, 31")
        A(f"    s_cbranch_scc1 L_body_{top}")
    for i in range(8):
        A(f"    ds_write_b128 v3, v[{VA+4*i}:{VA+4*i+3}] offset:{LD+1024*i}")
    for i in range(0, 32, 2):
        A(f"    v_pk_mov_b32 v[{VA+i}:{VA+i+1}], 0, 0")
    A("    s_cmp_eq_u32 s36, 0")
    A("    s_cbranch_scc1 L_sel")
    if int(epos):
        A("    s_lshr_b32 s58, s2, 3")
        A("    s_lshl_b32 s58, s58, 2")
        A("    s_add_u32 s58, s58, s50")
        A("    s_sub_u32 s58, s58, 1")
        A("    s_lshl_b32 s58, s58, 10")
        A(f"    v_lshl_add_u32 v{VT+1}, v0, 4, s58")
        A(f"    global_load_dwordx4 v[{QR+16}:{QR+19}], v{VT+1}, s[10:11]")
        if int(epos) == 2:
            A(f"    global_load_dwordx4 v[{QR+16}:{QR+19}], v{VT+1}, s[12:13]")
        assert len(order) == 4
    vis = sum((m - lo) << (4 * i) for i, m in enumerate(order))
    A("    s_lshl_b32 s51, s50, 2")
    A(f"    s_lshr_b32 s51, {vis:#x}, s51")
    A("    s_and_b32 s51, s51, 15")
    A("    s_lshl_b32 s51, s51, 8")
    A(f"    s_cmp_lt_u32 s50, {len(order)}")
    A("    s_cbranch_scc1 L_disp")
    if int(lay):
        A("    s_branch L_final")
        for m in order[1:]:
            body(m, True)
    A("L_final:")
    PR = ST + 16
    if lastbody:
        PR = VZ
        A(f"    ds_read_b64 v[{PR}:{PR+1}], v4 offset:{LP}")
        for s in range(U):
            if s + D < U:
                n = nwait(s, D)
            else:
                n = count(U - 1, s)
            A(f"    s_waitcnt vmcnt({n})")
            p = s % 4
            r = RING + 8 * s
            if s + D < U:
                if not quad:
                    issue(s + D)
                elif (s + D) % 2 == 0:
                    issue2(s + D)
            if int(lopt):
                ST2 = 220
                blk = s // 4
                cur = ST if blk % 2 else ST2
                prv = ST2 if blk % 2 else ST

                def mf(i, st, bb):
                    pa = EP + 4 * (bb % 4)
                    A(f"    v_mfma_f32_16x16x32_bf16 v[{VA+4*i}:{VA+4*i+3}], v[{pa}:{pa+3}], v[{st+4*i}:{st+4*i+3}], v[{VA+4*i}:{VA+4*i+3}]")
                for i in range(8):
                    sel = "s38" if (i & 1) else "s37"
                    A(f"    v_perm_b32 v{cur+4*i+p}, v{r+4+(i>>1)}, v{r+(i>>1)}, {sel}")
                    if blk and p < 3:
                        lst = [x for x in range(8) if x // 3 == p]
                        if i % 3 == 0 and i // 3 < len(lst):
                            mf(lst[i // 3], prv, blk - 1)
                    if s == 15 and i >= 2:
                        mf(i - 2, cur, blk)
                if s == 15:
                    mf(6, cur, blk)
                    mf(7, cur, blk)
                continue
            for i in range(8):
                sel = "s38" if (i & 1) else "s37"
                A(f"    v_perm_b32 v{ST+4*i+p}, v{r+4+(i>>1)}, v{r+(i>>1)}, {sel}")
            if p == 3:
                pa = EP + 4 * ((s // 4) % 4)
                for i in range(8):
                    t = ST + 4 * i
                    c = VA + 4 * i
                    A(f"    v_mfma_f32_16x16x32_bf16 v[{c}:{c+3}], v[{pa}:{pa+3}], v[{t}:{t+3}], v[{c}:{c+3}]")
        A("    s_nop 0")
    if stamp:
        A("    s_memrealtime s[62:63]")
        A("    s_waitcnt lgkmcnt(0)")
    if not lastbody:
        A(f"    ds_read_b64 v[{PR}:{PR+1}], v4 offset:{LP}")
    for i in range(8):
        A(f"    v_cvt_pk_bf16_f32 v{ST+2*i}, v{VA+4*i}, v{VA+4*i+1}")
        A(f"    v_cvt_pk_bf16_f32 v{ST+2*i+1}, v{VA+4*i+2}, v{VA+4*i+3}")
    A("    s_waitcnt lgkmcnt(0)")
    for i in range(8):
        A(f"    v_mfma_f32_16x16x16_bf16 v[{VA+4*i}:{VA+4*i+3}], v[{PR}:{PR+1}], v[{ST+2*i}:{ST+2*i+1}], 0")
    A("    s_nop 1")
    for p in range(4):
        for r in range(4):
            A(f"    v_cvt_pk_bf16_f32 v{ST+4*r+p}, v{VA+4*(2*p)+r}, v{VA+4*(2*p+1)+r}")
    for r in range(4):
        off = f" offset:{256*r}" if r else ""
        A(f"    buffer_store_dwordx4 v[{ST+4*r}:{ST+4*r+3}], v5, s[32:35], 0 offen{off}{' ' + ofl if ofl else ''}")
    A("    s_cmp_lg_u32 s36, 0")
    A("    s_cbranch_scc1 L_helper")
    if stamp:
        A("    s_waitcnt vmcnt(0)")
        A("    s_memrealtime s[64:65]")
        A("    s_getreg_b32 s66, hwreg(HW_REG_XCC_ID)")
        A("    s_getreg_b32 s67, hwreg(HW_REG_HW_ID)")
        A("    s_waitcnt lgkmcnt(0)")
        A("    s_lshl_b32 s76, s2, 6")
        for i in range(12):
            A(f"    v_mov_b32 v{8+i}, s{60+i}")
        A("    v_mov_b32 v4, s76")
        A("    s_lshl_b32 s77, s76, 2")
        A("    s_add_u32 s77, s77, 0x200000")
        A("    v_lshl_add_u32 v5, v0, 2, s77")
        A(f"    global_store_dword v5, v{VT}, s[18:19]")
        A("    s_mov_b64 exec, 1")
        A("    global_store_dwordx4 v4, v[8:11], s[18:19]")
        A("    global_store_dwordx4 v4, v[12:15], s[18:19] offset:16")
        A("    global_store_dwordx4 v4, v[16:19], s[18:19] offset:32")
    A("L_end:")
    A("    s_endpgm")

    A("L_helper:")
    A("    s_mov_b64 exec, -1")
    A(f"    v_mov_b32 v{VZ}, 0")
    Q = RING
    KP = RING + 16
    KB = RING + 48
    X = RING + 64
    a, b = X + 4, X + 5
    if stamp:
        A("    s_memrealtime s[94:95]")
        A(f"    v_mov_b32 v{VT}, 0")
    if int(early):
        Q = QR
    else:
        A("    s_add_u32 s24, s4, s48")
        A("    s_addc_u32 s25, s5, 0")
        A("    s_mov_b32 s26, 2048")
        A("    s_mov_b32 s34, 2048")
        A("    v_lshlrev_b32 v9, 8, v7")
        A("    v_lshl_add_u32 v9, v6, 6, v9        ; q voffset = c*256 + g*64")
        A("    s_waitcnt vmcnt(0)")
        for kk in range(4):
            off = f" offset:{16*kk}" if kk else ""
            if int(tmask) & 4:
                A(f"    buffer_load_dwordx4 v[{Q+4*kk}:{Q+4*kk+3}], v9, s[24:27], 0 offen{off}{' ' + qfl if qfl else ''}")
        A(f"    v_mov_b32 v13, {REG:#x}")
        if int(tmask) & 1:
            A(f"    buffer_load_dword v16, v{VZ}, s[32:35], 0 offen")
        if int(tmask) & 2:
            A("    global_load_dword v17, v13, s[44:45] nt")
    if int(fpos):
        A("    s_lshr_b32 s58, s2, 3")
        A("    s_lshl_b32 s58, s58, 12")
        A("    v_lshl_add_u32 v8, v0, 4, s58")
        for k in range(4):
            A(f"    global_load_dwordx4 v[{RING+96+4*k}:{RING+96+4*k+3}], v8, s[12:13] offset:{1024*k}")
    if int(spre) == 2:
        A("    s_lshr_b32 s62, s2, 3")
        A("    s_lshl_b32 s62, s62, 12")
        A("    s_add_u32 s63, s62, 4096")
        A("L_spre2:")
        for k in range(4):
            A(f"    s_load_dword s64, s[12:13], s62 offset:{128*k}")
        A("    s_add_u32 s62, s62, 512")
        A("    s_cmp_lt_u32 s62, s63")
        A("    s_cbranch_scc1 L_spre2")
    A("    v_lshrrev_b32 v9, 2, v7")
    A("    v_lshlrev_b32 v9, 8, v9")
    A("    v_lshl_add_u32 v9, v6, 6, v9")
    A("    v_and_b32 v11, 3, v7")
    A("    v_lshl_add_u32 v9, v11, 2, v9")
    if ctrl:
        A(f"    s_mov_b32 s50, {first}")
        A(f"    s_mov_b32 s51, {wsoff:#x}")
        A("    s_and_b32 s59, s2, 7")
        A("    s_lshr_b32 s54, s2, 4")
        A("    s_and_b32 s54, s54, 8")
        A("    s_or_b32 s59, s59, s54")
        A("    s_lshl_b32 s59, s59, 7")
        A("    s_mov_b32 s31, 0")
        A("    s_mov_b32 s30, 0")
        A("    v_mov_b32 v18, 0")
        A(f"    s_mov_b32 s46, {f2u(kp * 256 / 100):#x}")
        A(f"    s_mov_b32 s47, {f2u(float(d0fx)):#x}")
        if hyb >= 0 and float(ld0):
            A("    s_cmp_eq_u32 s93, 1")
            A(f"    s_cselect_b32 s47, {f2u(float(int(round((float(ld0) - lo) * 256)))):#x}, s47")
        A("    v_mov_b32 v20, s47")
        A("L_meet:")
        A("    s_waitcnt lgkmcnt(0)")
        A("    s_barrier")
        A("    s_memrealtime s[28:29]")
        if int(sref):
            nref = 256 >> bin(smask).count("1")
            A("    s_add_u32 s62, s18, s51")
            A("    s_addc_u32 s63, s19, 0")
            A("    s_waitcnt lgkmcnt(0)")
            for j in range(nref):
                A(f"    s_load_dword s{76+j}, s[62:63], {128*j - 2048}")
            A(f"    s_and_b32 s54, s2, {smask:#x}")
            A("    s_cbranch_scc1 L_noref")
            A("    v_mov_b32 v13, s59")
            A("    v_mov_b32 v15, s28")
            A("    s_mov_b64 exec, 1")
            A("    global_store_dword v13, v15, s[62:63] sc1")
            A("    s_mov_b64 exec, -1")
            A("L_noref:")
            A("    s_add_u32 s51, s51, 2048")
            A("    s_sub_u32 s29, s28, s31")
            A("    s_sub_u32 s55, s29, s30")
            A("    s_mov_b32 s30, s29")
            A("    s_add_u32 s29, s31, 0x400")
            A("    s_mov_b32 s31, s28")
            A("    s_mov_b32 s54, 0")
            A("    s_mov_b32 s52, -1")
            A("    s_waitcnt lgkmcnt(0)")
            for j in range(nref):
                A(f"    s_sub_u32 s{76+j}, s29, s{76+j}")
                A(f"    s_add_u32 s53, s{76+j}, 0x10000")
                A(f"    s_cmp_lt_u32 s{76+j}, 0x800")
                A("    s_cselect_b32 s53, s53, 0")
                A("    s_add_u32 s54, s54, s53")
                if float(beta):
                    A(f"    s_min_u32 s52, s52, s{76+j}")
        else:
            A("    s_sub_u32 s54, s51, 2048")
            A("    v_lshl_add_u32 v13, v7, 7, s54")
            A("    global_load_dword v14, v13, s[18:19] sc1")
            A("    s_waitcnt lgkmcnt(0)")
            A(f"    s_and_b32 s54, s2, {smask:#x}")
            A("    s_cbranch_scc1 L_noref")
            A("    s_add_u32 s54, s51, s59")
            A("    v_mov_b32 v13, s54")
            A("    v_mov_b32 v15, s28")
            A("    s_mov_b64 exec, 1")
            A("    global_store_dword v13, v15, s[18:19] sc1")
            A("    s_mov_b64 exec, -1")
            A("L_noref:")
            A("    s_add_u32 s51, s51, 2048")
            A("    s_sub_u32 s29, s28, s31")
            A("    s_sub_u32 s55, s29, s30")
            A("    s_mov_b32 s30, s29")
            A("    s_waitcnt vmcnt(0)")
            A("    v_sub_u32 v14, s31, v14")
            A("    s_mov_b32 s31, s28")
            A("    v_add_u32 v15, 0x400, v14")
            A("    v_cmp_gt_u32 vcc, 0x800, v15")
            A("    v_add_u32 v15, 0x10000, v15")
            A("    s_nop 0")
            A("    v_cndmask_b32 v15, 0, v15, vcc")
            for sh in (1, 2, 4, 8):
                A("    s_nop 1")
                A(f"    v_add_u32_dpp v15, v15, v15 row_shr:{sh} row_mask:0xf bank_mask:0xf bound_ctrl:0")
            A("    s_nop 1")
            A("    v_readlane_b32 s54, v15, 15")
        A("    s_lshr_b32 s53, s54, 16")
        A("    s_cbranch_scc0 L_keep")
        A(f"    s_cmp_eq_u32 s50, {first}")
        A("    s_cbranch_scc1 L_keep")
        A("    s_and_b32 s54, s54, 0xffff")
        A("    v_cvt_f32_u32 v14, s53")
        A("    v_cvt_f32_u32 v15, s54")
        A("    v_rcp_f32 v14, v14")
        A("    v_cvt_f32_i32 v19, s55")
        A("    v_mul_f32 v14, v14, v15")
        if float(beta):
            A("    v_cvt_f32_u32 v21, s52")
            A("    v_sub_f32 v21, v21, v14")
        A("    v_add_f32 v14, 0xc4800000, v14")
        if pred:
            A("    v_sub_f32 v15, v14, v18")
            A("    v_add_f32 v15, v15, v19")
            A(f"    s_cmp_le_u32 s50, {first + period}")
            A("    s_cselect_b32 s54, 0, 1.0")
            A("    v_mov_b32 v18, v14")
            A("    v_fma_f32 v14, v15, s54, v14")
        if float(beta):
            A(f"    v_fmac_f32 v14, {f2u(float(beta)):#x}, v21")
        if float(ki):
            A(f"    v_mov_b32 v15, {f2u(float(ki) * 256 / 100):#x}")
            A("    v_fma_f32 v20, v14, v15, v20")
            A(f"    v_max_f32 v20, {f2u(float(d0fx - 256)):#x}, v20")
            A(f"    v_min_f32 v20, {f2u(float(d0fx + 256)):#x}, v20")
            A("    v_fma_f32 v14, v14, s46, v20")
        else:
            A("    v_mov_b32 v15, s47")
            A("    v_fma_f32 v14, v14, s46, v15")
        A("    v_cvt_i32_f32 v14, v14")
        A("    v_max_i32 v14, 0, v14")
        A(f"    v_min_i32 v14, {maxfx}, v14")
        A(f"    ds_write_b32 v{VZ}, v14 offset:{LC}")
        if stamp:
            A("    s_mov_b32 m0, s50")
            A("    v_readfirstlane_b32 s54, v14")
            A("    s_nop 4")
            A(f"    v_writelane_b32 v{VT}, s54, m0")
        A("L_keep:")
        A(f"    s_cmp_eq_u32 s50, {soft}")
        A("    s_cbranch_scc1 L_soft")
        A("L_back:")
        A(f"    s_add_u32 s50, s50, {period}")
        A(f"    s_cmp_le_u32 s50, {cks[-1]}")
        A("    s_cbranch_scc1 L_meet")
        if bells[-1] != cks[-1]:
            A("    s_waitcnt lgkmcnt(0)")
            A("    s_barrier")
        if stamp:
            A("    s_sub_u32 s94, s94, s60")
            A(f"    v_writelane_b32 v{VT}, s94, 0")
            A("    s_lshl_b32 s64, s2, 8")
            A("    s_add_u32 s64, s64, 0x300000")
            A("    v_lshl_add_u32 v24, v0, 2, s64")
            A(f"    global_store_dword v24, v{VT}, s[18:19]")
        A("    s_endpgm")
        A("L_soft:")
    else:
        A("    s_waitcnt vmcnt(0) lgkmcnt(0)")
        A("    s_barrier")
        A("    s_barrier")
    for kk in range(4):
        for i in range(8):
            A(f"    ds_read_b32 v{KP+8*kk+i}, v9 offset:{LD+1024*i+16*kk}")
        A("    s_waitcnt lgkmcnt(0)")
    A("    s_waitcnt vmcnt(0)")
    A("    s_mov_b32 s56, 0x3db504f3          ; 128^-0.5")
    A("    s_mov_b32 s57, 0x3fb8aa3b          ; log2(e)")
    A("    s_mov_b32 s58, 0xffff0000")
    for kk in range(4):
        for p in range(4):
            A(f"    v_cvt_pk_bf16_f32 v{KB+4*kk+p}, v{KP+8*kk+2*p}, v{KP+8*kk+2*p+1}")
    A("    s_nop 1")
    for kk in range(4):
        c = "0" if kk == 0 else f"v[{X}:{X+3}]"
        A(f"    v_mfma_f32_16x16x32_bf16 v[{X}:{X+3}], v[{KB+4*kk}:{KB+4*kk+3}], v[{Q+4*kk}:{Q+4*kk+3}], {c}")
    A("    s_nop 7")

    def rnd():
        A(f"    v_cvt_pk_bf16_f32 v{a}, v{X}, v{X+1}")
        A(f"    v_cvt_pk_bf16_f32 v{b}, v{X+2}, v{X+3}")
        A(f"    v_lshlrev_b32 v{X}, 16, v{a}")
        A(f"    v_and_b32 v{X+1}, s58, v{a}")
        A(f"    v_lshlrev_b32 v{X+2}, 16, v{b}")
        A(f"    v_and_b32 v{X+3}, s58, v{b}")
    rnd()
    for r in range(4):
        A(f"    v_mul_f32 v{X+r}, s56, v{X+r}")
    rnd()

    def xred(op):
        A(f"    v_mov_b32 v{b}, v{a}")
        A("    s_nop 1")
        A(f"    v_permlane16_swap_b32 v{a}, v{b}")
        A(f"    {op} v{a}, v{a}, v{b}")
        A(f"    v_mov_b32 v{b}, v{a}")
        A("    s_nop 1")
        A(f"    v_permlane32_swap_b32 v{a}, v{b}")
        A(f"    {op} v{a}, v{a}, v{b}")
    A(f"    v_max_f32 v{a}, v{X}, v{X+1}")
    A(f"    v_max3_f32 v{a}, v{X+2}, v{X+3}, v{a}")
    xred("v_max_f32")
    for r in range(4):
        A(f"    v_sub_f32 v{X+r}, v{X+r}, v{a}")
    for r in range(4):
        A(f"    v_mul_f32 v{X+r}, s57, v{X+r}")
    for r in range(4):
        A(f"    v_exp_f32 v{X+r}, v{X+r}")
    A("    s_nop 0")
    A(f"    v_add_f32 v{a}, v{X}, v{X+1}")
    A(f"    v_add_f32 v{b}, v{X+2}, v{X+3}")
    A(f"    v_add_f32 v{a}, v{a}, v{b}")
    xred("v_add_f32")
    A(f"    v_rcp_f32 v{a}, v{a}")
    A("    s_nop 0")
    for r in range(4):
        A(f"    v_mul_f32 v{X+r}, v{X+r}, v{a}")
    A(f"    v_cvt_pk_bf16_f32 v{X+6}, v{X}, v{X+1}")
    A(f"    v_cvt_pk_bf16_f32 v{X+7}, v{X+2}, v{X+3}")
    A(f"    ds_write_b64 v4, v[{X+6}:{X+7}] offset:{LP}")
    if ctrl:
        A("    s_branch L_back")
    else:
        A("    s_waitcnt lgkmcnt(0)")
        A("    s_barrier")
        A("    s_endpgm")

    if int(w3):
        A("L_fetch:")
        if int(stouch):
            A("    s_lshl_b32 s48, s2, 11")
            A("    s_load_dword s64, s[8:9], s43")
            A("    s_load_dword s64, s[14:15], s48")
            A("    s_load_dword s64, s[4:5], s48")
            A(f"    s_mov_b32 s48, {wsoff - 128:#x}")
            A("    s_load_dword s64, s[18:19], s48")
        for t, base in enumerate(("s[10:11]", "s[12:13]")):
            if not (int(w3) >> t) & 1:
                continue
            A("    s_lshr_b32 s62, s2, 3")
            A("    s_lshl_b32 s62, s62, 12")
            A("    s_add_u32 s63, s62, 4096")
            A(f"L_fl{t}:")
            for k in range(8):
                A(f"    s_load_dword s64, {base}, s62 offset:{64*k}")
            A("    s_add_u32 s62, s62, 512")
            A("    s_cmp_lt_u32 s62, s63")
            A(f"    s_cbranch_scc1 L_fl{t}")
        if int(qpre):
            A("    s_lshl_b32 s62, s2, 11")
            A("    s_add_u32 s63, s62, 2048")
            A("L_flq:")
            for k in range(8):
                A(f"    s_load_dword s64, s[4:5], s62 offset:{64*k}")
            A("    s_add_u32 s62, s62, 512")
            A("    s_cmp_lt_u32 s62, s63")
            A("    s_cbranch_scc1 L_flq")
        A("    s_endpgm")
    A("L_codeend:")
    if int(cpre) or int(spre):
        A(f".if (L_codeend - L_pc) < {nk*1024+128}")
        A('.error "code prefetch runs past the code"')
        A(".endif")
    A('.section .rodata,"a"')
    A(".p2align 6")
    A(f".amdhsa_kernel {NAME}_kernel")
    A(f"  .amdhsa_next_free_vgpr {total}")
    A("  .amdhsa_next_free_sgpr 96")
    A(f"  .amdhsa_accum_offset {total}")
    A("  .amdhsa_group_segment_fixed_size 0")
    A("  .amdhsa_kernarg_size 64")
    A("  .amdhsa_user_sgpr_count 2")
    A("  .amdhsa_user_sgpr_kernarg_segment_ptr 1")
    A("  .amdhsa_system_sgpr_workgroup_id_x 1")
    A("  .amdhsa_float_denorm_mode_32 3")
    A(".end_amdhsa_kernel")
    return "\n".join(L) + "\n"


if __name__ == "__main__":
    out = sys.argv[1]
    kw = dict(a.split("=", 1) for a in sys.argv[2:])
    open(out, "w").write(gen(**kw))
```

```python
import sys
import struct

NAME = "standalone__low_rank_proj_linformer__sampling"

HEADER = """; Kernarg layout for this problem (64 bytes, ptrs only, base s[0:1]):
"""

DOC = """;
;
;
"""


def f2u(x):
    return struct.unpack("<I", struct.pack("<f", x))[0]


def gen(d0=10.7, dinit=11, kp=3.0, beta=0.0, period=2, first=11, last=61, stamp=0, lds=90000,
        wsoff=0x1000, xr="....3.210", ofl="", topt=1, cache="nt", ecache="", emask=15, fmask=7, qfl=""):
    d0 = float(d0); kp = float(kp); beta = float(beta); dinit = float(dinit)
    period = int(period); first = int(first); last = int(last); stamp = int(stamp); lds = int(lds)
    wsoff = int(str(wsoff), 0); topt = int(topt)
    L = []
    A = L.append
    U = 16
    lo, hi = 9, 12
    D = hi
    levels = list(range(lo, hi + 1))
    G0, G1 = 13, 16
    BP = (11, 12)
    skip = (1 << G0) | (1 << G1) | (1 << BP[0]) | (1 << BP[1])
    NREF = 8
    ST = 8
    VA = 40
    RING = 72
    EP = RING + 8 * U
    VZ, VD = 216, 217
    VT = 218
    ST2 = 220
    total = 252
    LD = 0
    LP = 8192
    LC = LP + 512
    assert lds >= LC + 64
    meets = list(range(first, last + 1, period))
    soft = min(c for c in meets if c >= 33)
    assert meets[0] < 32 and meets[-1] > soft and meets[-1] <= 63
    dmask = sum(1 << x for x in meets)
    bmask = (1 << 32) | (1 << 63)
    fx = lambda d: int(round((d - lo) * 256))

    A(HEADER + f"; @launch grid=(256,1,1) block=(192,1,1) lds={lds}")
    A(DOC.rstrip("\n"))
    A('.amdgcn_target "amdgcn-amd-amdhsa--gfx950"')
    A(".text")
    A(f".globl {NAME}_kernel")
    A(".p2align 8")
    A(f".type {NAME}_kernel,@function")
    A(f"{NAME}_kernel:")
    A("    s_load_dwordx16 s[4:19], s[0:1], 0")
    if stamp:
        A("    s_memrealtime s[60:61]")
        A(f"    v_mov_b32 v{VT}, 0")
    A("    s_cmp_ge_u32 s2, 256")
    A("    s_cbranch_scc1 L_end")
    A("    v_readfirstlane_b32 s36, v0")
    A("    v_and_b32 v0, 63, v0                ; lane")
    A("    v_lshrrev_b32 v6, 4, v0             ; g")
    A("    v_and_b32 v7, 15, v0                ; c")
    A("    v_and_b32 v3, 1, v6")
    A("    v_lshrrev_b32 v4, 1, v6")
    A(f"    v_lshlrev_b32 v1, {G0}, v3")
    A(f"    v_lshl_add_u32 v1, v4, {G1}, v1")
    A("    v_lshrrev_b32 v2, 7, v1")
    A("    v_lshl_add_u32 v1, v7, 4, v1")
    A("    v_lshl_add_u32 v2, v7, 13, v2")
    A("    s_lshl_b32 s43, s2, 20")
    A("    s_cmp_eq_u32 s36, 0")
    A("    s_cselect_b32 s22, 0x200000, 0")
    A("    s_mov_b32 s23, 0x20000")
    A("    s_cselect_b32 s26, 0x20000, 0")
    A("    s_mov_b32 s27, 0x20000")
    A("    s_mov_b32 s57, 0")
    if xr == "....3.210":
        A("    s_brev_b32 s56, s2")
        A("    s_lshr_b32 s58, s56, 13")
        A("    s_and_b32 s58, s58, 0x8000")
        A("    s_lshr_b32 s56, s56, 12")
        A("    s_and_b32 s56, s56, 0xe0000")
        A("    s_or_b32 s56, s56, s58")
    else:
        A("    s_mov_b32 s56, 0")
        for k, ch in enumerate(xr):
            if ch != '.':
                A(f"    s_bfe_u32 s58, s2, {int(ch) | (1 << 16):#x}")
                A(f"    s_lshl_b32 s58, s58, {11+k}")
                A("    s_or_b32 s56, s56, s58")
    A("    s_mov_b32 s39, s56")
    A("    s_waitcnt lgkmcnt(0)")
    A("    s_add_u32 s20, s6, s43")
    A("    s_addc_u32 s21, s7, 0")
    A("    s_mov_b64 s[24:25], s[10:11]")
    A("    s_cmp_lg_u32 s36, 0")
    A("    s_cbranch_scc1 L_other")

    def issue(u, first=False):
        p = u % 4
        if p == 0:
            blk = (u // 4) % 4
            if blk == 0:
                if not first:
                    A(f"    s_or_b32 s57, s57, {skip:#x}")
                    A("    s_add_u32 s57, s57, 0x800")
                    A(f"    s_and_b32 s57, s57, {~skip & 0xffffffff:#x}")
                    A("    s_cmp_ge_u32 s57, 0x100000")
                    A("    s_cselect_b64 s[20:21], s[44:45], s[20:21]")
                    A("    s_cselect_b64 s[24:25], s[12:13], s[24:25]")
                    A("    s_xor_b32 s39, s57, s56")
            else:
                d = 0
                for k in range(2):
                    if ((blk ^ (blk - 1)) >> k) & 1:
                        d |= 1 << BP[k]
                A(f"    s_xor_b32 s39, s39, {d:#x}")
        if p == 3:
            A("    s_bfe_u32 s40, s39, 0xd0007")
            r = EP + 4 * ((u // 4) % 4)
            A(f"    buffer_load_dwordx4 v[{r}:{r+3}], v2, s[24:27], s40 offen{' ' + ecache if ecache and (int(emask) >> ((u // 4) % 4)) & 1 else ''}")
        r = RING + 8 * (u % U)
        for h in range(2):
            o = 512 * p + 256 * h
            off = f" offset:{o}" if o else ""
            A(f"    buffer_load_dwordx4 v[{r+4*h}:{r+4*h+3}], v1, s[20:23], s39 offen{off} {cache}")

    def nwait(s, dm):
        return 2 * (dm - 1) + sum(1 for u in range(s + D - dm + 1, s + D) if u % 4 == 3)

    def perm(i, s, st):
        r = RING + 8 * (s % U)
        return f"    v_perm_b32 v{st+4*i+s%4}, v{r+4+(i>>1)}, v{r+(i>>1)}, {'s38' if i & 1 else 's37'}"

    def mfma(i, st, blk):
        pa = EP + 4 * (blk % 4)
        c = VA + 4 * i
        return f"    v_mfma_f32_16x16x32_bf16 v[{c}:{c+3}], v[{pa}:{pa+3}], v[{st+4*i}:{st+4*i+3}], v[{c}:{c+3}]"

    def body(m, br):
        A(f"; ---- one pass with {m} slots in flight")
        A(f"L_body_{m}:")
        for s in range(U):
            A(f"    s_waitcnt vmcnt({nwait(s, m)})")
            issue(s + D)
            for i in range(8):
                A(perm(i, s, ST))
            if s == 13:
                A(f"    ds_read_b32 v{VD}, v{VZ} offset:{LC}")
            if s == 15:
                A("    s_waitcnt lgkmcnt(0)")
                A(f"    v_readfirstlane_b32 s49, v{VD}")
            if s % 4 == 3:
                for i in range(8):
                    A(mfma(i, ST, s // 4))
        if br:
            A("    s_branch L_next")

    for u in range(D):
        issue(u, first=(u == 0))
    A("    s_branch L_setup")
    NK = 10
    A("L_other:")
    A("    s_cmp_eq_u32 s36, 64")
    A("    s_cbranch_scc1 L_setup")
    A("    s_getpc_b64 s[58:59]")
    A("L_pc:")
    A("    s_lshr_b32 s62, s2, 3")
    A(f"    s_mul_i32 s63, s62, {NK}")
    A("    s_lshr_b32 s63, s63, 5")
    A("    s_lshl_b32 s63, s63, 10")
    A("    v_lshl_add_u32 v8, v0, 4, s63")
    A("    global_load_dwordx4 v[12:15], v8, s[58:59]")
    A("    s_branch L_fetch")
    A("L_setup:")
    A("    s_mov_b32 s37, 0x05040100")
    A("    s_mov_b32 s38, 0x07060302")
    A("    s_add_u32 s44, s8, s43")
    A("    s_addc_u32 s45, s9, 0")
    A("    s_sub_u32 s44, s44, 0x100000")
    A("    s_subb_u32 s45, s45, 0")
    A("    s_lshl_b32 s48, s2, 11")
    A("    s_add_u32 s32, s14, s48")
    A("    s_addc_u32 s33, s15, 0")
    A("    s_mov_b32 s35, 0x20000")
    A("    s_cmp_eq_u32 s36, 0")
    A("    s_cselect_b32 s34, 2048, 0")
    A(f"    s_cselect_b32 s52, {dmask & 0xffffffff:#x}, 0")
    A(f"    s_cselect_b32 s53, {dmask >> 32:#x}, 0")
    A(f"    s_cselect_b32 s54, {bmask & 0xffffffff:#x}, -1")
    A(f"    s_cselect_b32 s55, {bmask >> 32:#x}, -1")
    A("    s_mov_b32 s50, 0")
    A("    s_mov_b32 s51, 128")
    A("    v_lshlrev_b32 v3, 4, v0             ; lane*16")
    A("    v_lshlrev_b32 v4, 3, v0             ; lane*8")
    A("    v_lshlrev_b32 v5, 10, v6")
    A("    v_lshl_add_u32 v5, v7, 4, v5")
    A(f"    v_mov_b32 v{VZ}, 0")
    A(f"    v_mov_b32 v{VD}, {fx(dinit)}")
    A(f"    ds_write_b32 v{VZ}, v{VD} offset:{LC}")
    for i in range(0, 32, 2):
        A(f"    v_pk_mov_b32 v[{VA+i}:{VA+i+1}], 0, 0")
    if stamp:
        A("    s_memrealtime s[68:69]")
        A(f"    s_waitcnt vmcnt({nwait(0, D)})")
        A("    s_memrealtime s[70:71]")
        A("    s_mov_b32 s74, 0")
        A("    s_waitcnt lgkmcnt(0)")
    start = int(round(dinit))
    order = [start] + sorted([m for m in levels if m != start], key=lambda m: abs(m - d0))
    body(order[0], False)
    A("L_next:")
    if stamp:
        A("    s_and_b32 s75, s50, 1")
        A("    s_cbranch_scc0 L_notr")
        A("    s_memrealtime s[72:73]")
        A("    s_waitcnt lgkmcnt(0)")
        A("    s_sub_u32 s72, s72, s60")
        A("    s_mov_b32 m0, s74")
        A("    s_add_u32 s74, s74, 1")
        A("    s_nop 4")
        A(f"    v_writelane_b32 v{VT}, s72, m0")
        A("L_notr:")
    A("    s_add_u32 s50, s50, 1")
    A("    s_bitcmp0_b64 s[52:53], s50")
    A("    s_cbranch_scc1 L_nomeet")
    A("    s_barrier")
    A("L_nomeet:")
    A("    s_bitcmp1_b64 s[54:55], s50")
    A("    s_cbranch_scc1 L_slow")
    A("L_sel:")
    A("    s_and_b32 s51, s51, 255")
    A("    s_add_u32 s51, s51, s49")
    A("L_disp:")
    for m in levels[:-1]:
        A(f"    s_cmp_lt_u32 s51, {256*(m-lo+1)}")
        A(f"    s_cbranch_scc1 L_body_{m}")
    A(f"    s_branch L_body_{hi}")
    A("L_slow:")
    A("    s_cmp_eq_u32 s50, 63")
    A("    s_cbranch_scc1 L_last")
    for i in range(8):
        A(f"    ds_write_b128 v3, v[{VA+4*i}:{VA+4*i+3}] offset:{LD+1024*i}")
    for i in range(0, 32, 2):
        A(f"    v_pk_mov_b32 v[{VA+i}:{VA+i+1}], 0, 0")
    A("    s_cmp_eq_u32 s36, 0")
    A("    s_cbranch_scc1 L_sel")
    vis = sum((m - lo) << (4 * i) for i, m in enumerate(order))
    A("    s_lshl_b32 s51, s50, 2")
    A(f"    s_lshr_b32 s51, {vis:#x}, s51")
    A("    s_and_b32 s51, s51, 15")
    A("    s_lshl_b32 s51, s51, 8")
    A(f"    s_cmp_lt_u32 s50, {len(order)}")
    A("    s_cbranch_scc1 L_disp")
    A("    s_branch L_last")
    for m in order[1:]:
        body(m, True)

    A("L_last:")
    PR = VZ
    A(f"    ds_read_b64 v[{PR}:{PR+1}], v4 offset:{LP}")
    for s in range(U):
        if s + D < U:
            n = nwait(s, D)
        else:
            n = 2 * (U - 1 - s) + sum(1 for u in range(s + 1, U) if u % 4 == 3)
        A(f"    s_waitcnt vmcnt({n})" + (" lgkmcnt(0)" if s == 8 else ""))
        if s + D < U:
            issue(s + D)
        blk, p = s // 4, s % 4
        cur, prv = (ST, ST2) if blk % 2 else (ST2, ST)
        if s == U - 1:
            break
        for i in range(8):
            A(perm(i, s, cur))
            if blk and p < 3:
                lst = [x for x in range(8) if x // 3 == p]
                if i % 3 == 0 and i // 3 < len(lst):
                    A(mfma(lst[i // 3], prv, blk - 1))
    VB = ST2
    OB = ST2 + 16
    cv1 = lambda i, h: f"    v_cvt_pk_bf16_f32 v{VB+2*i+h}, v{VA+4*i+2*h}, v{VA+4*i+2*h+1}"
    mm2 = lambda i: f"    v_mfma_f32_16x16x16_bf16 v[{VA+4*i}:{VA+4*i+3}], v[{PR}:{PR+1}], v[{VB+2*i}:{VB+2*i+1}], 0"
    cv2 = lambda p, r: f"    v_cvt_pk_bf16_f32 v{OB+4*r+p}, v{VA+4*(2*p)+r}, v{VA+4*(2*p+1)+r}"
    ops = {}
    for i in range(8):
        ops[f"P{i}"] = (perm(i, U - 1, ST), [])
        ops[f"M{i}"] = (mfma(i, ST, 3), [(f"P{i}", 3)])
        for h in range(2):
            ops[f"C{i}{h}"] = (cv1(i, h), [(f"M{i}", 9)])
        ops[f"N{i}"] = (mm2(i), [(f"C{i}0", 3), (f"C{i}1", 3), (f"M{i}", 9)])
    for p in range(4):
        for r in range(4):
            ops[f"O{p}{r}"] = (cv2(p, r), [(f"N{2*p}", 9), (f"N{2*p+1}", 9)])
    if topt:
        mseq = [f"M{i}" for i in range(8)] + [f"N{i}" for i in range(8)]
        vseq = [f"P{i}" for i in range(8)] + [f"C{i}{h}" for i in range(8) for h in range(2)] + \
               [f"O{p}{r}" for p in range(4) for r in range(4)]
    else:
        mseq = []
        vseq = [f"P{i}" for i in range(8)] + [f"M{i}" for i in range(8)] + \
               [f"C{i}{h}" for i in range(8) for h in range(2)] + [f"N{i}" for i in range(8)] + \
               [f"O{p}{r}" for p in range(4) for r in range(4)]
    pos = {}
    slot = 0
    since_m = 99
    ready = lambda n: all(d in pos and slot - pos[d] >= k for d, k in ops[n][1])
    while mseq or vseq:
        pick = None
        if mseq and ready(mseq[0]) and (since_m >= 2 or not (vseq and ready(vseq[0]))):
            pick = mseq.pop(0); since_m = -1
        elif vseq and ready(vseq[0]):
            pick = vseq.pop(0)
        if pick is None:
            A("    s_nop 0")
        else:
            A(ops[pick][0])
            pos[pick] = slot
        slot += 1
        since_m += 1
    for r in range(4):
        off = f" offset:{256*r}" if r else ""
        A(f"    buffer_store_dwordx4 v[{OB+4*r}:{OB+4*r+3}], v5, s[32:35], 0 offen{off}{' ' + ofl if ofl else ''}")
    A("    s_cmp_lg_u32 s36, 0")
    A("    s_cbranch_scc1 L_helper")
    if stamp:
        A("    s_memrealtime s[62:63]")
        A("    s_waitcnt vmcnt(0)")
        A("    s_memrealtime s[64:65]")
        A("    s_getreg_b32 s66, hwreg(HW_REG_XCC_ID)")
        A("    s_getreg_b32 s67, hwreg(HW_REG_HW_ID)")
        A("    s_waitcnt lgkmcnt(0)")
        A("    s_lshl_b32 s76, s2, 6")
        for i in range(12):
            A(f"    v_mov_b32 v{8+i}, s{60+i}")
        A("    v_mov_b32 v4, s76")
        A("    s_lshl_b32 s77, s76, 2")
        A("    s_add_u32 s77, s77, 0x200000")
        A("    v_lshl_add_u32 v5, v0, 2, s77")
        A(f"    global_store_dword v5, v{VT}, s[18:19]")
        A("    s_mov_b64 exec, 1")
        A("    global_store_dwordx4 v4, v[8:11], s[18:19]")
        A("    global_store_dwordx4 v4, v[12:15], s[18:19] offset:16")
        A("    global_store_dwordx4 v4, v[16:19], s[18:19] offset:32")
    A("L_end:")
    A("    s_endpgm")

    A("L_helper:")
    Q = RING
    KP = RING + 16
    KB = RING + 48
    X = RING + 64
    a, b = X + 4, X + 5
    A(f"    v_mov_b32 v{VZ}, 0")
    A("    s_add_u32 s24, s4, s48")
    A("    s_addc_u32 s25, s5, 0")
    A("    s_mov_b32 s26, 2048")
    A("    s_mov_b32 s34, 2048")
    A("    v_lshlrev_b32 v9, 8, v7")
    A("    v_lshl_add_u32 v9, v6, 6, v9")
    A("    s_waitcnt vmcnt(0)")
    for kk in range(4):
        off = f" offset:{16*kk}" if kk else ""
        A(f"    buffer_load_dwordx4 v[{Q+4*kk}:{Q+4*kk+3}], v9, s[24:27], 0 offen{off}{' ' + qfl if qfl else ''}")
    A("    v_mov_b32 v13, 0x100000")
    A(f"    buffer_load_dword v16, v{VZ}, s[32:35], 0 offen")
    A("    global_load_dword v17, v13, s[44:45] nt")
    A("    v_lshrrev_b32 v9, 2, v7")
    A("    v_lshlrev_b32 v9, 8, v9             ;   (r>>2)*256 + g*64 + (r&3)*4")
    A("    v_lshl_add_u32 v9, v6, 6, v9")
    A("    v_and_b32 v11, 3, v7")
    A("    v_lshl_add_u32 v9, v11, 2, v9")
    A(f"    s_mov_b32 s50, {first}")
    A(f"    s_add_u32 s62, s18, {wsoff:#x}")
    A("    s_addc_u32 s63, s19, 0")
    A("    s_lshl_b32 s59, s2, 7")
    A("    v_mov_b32 v13, s59")
    A("    s_mov_b32 s31, 0")
    A("    s_mov_b32 s30, 0")
    A("    v_mov_b32 v18, 0")
    A(f"    s_mov_b32 s46, {f2u(kp * 256 / 100):#x}")
    A(f"    v_mov_b32 v20, {f2u(float(fx(d0))):#x}")
    A("L_meet:")
    A("    s_waitcnt lgkmcnt(0)")
    A("    s_barrier")
    A("    s_memrealtime s[28:29]")
    A("    s_waitcnt lgkmcnt(0)")
    for j in range(NREF):
        A(f"    s_load_dword s{76+j}, s[62:63], {128*j - 1024}" + ("   ; reference arrivals at the previous meeting" if j == 0 else ""))
    A(f"    s_cmp_ge_u32 s2, {NREF}")
    A("    s_cbranch_scc1 L_noref")
    A("    v_mov_b32 v15, s28")
    A("    s_mov_b64 exec, 1")
    A("    global_store_dword v13, v15, s[62:63] sc1")
    A("    s_mov_b64 exec, -1")
    A("L_noref:")
    A("    s_add_u32 s62, s62, 1024")
    A("    s_addc_u32 s63, s63, 0")
    A("    s_sub_u32 s29, s28, s31")
    A("    s_sub_u32 s55, s29, s30")
    A("    s_mov_b32 s30, s29")
    A("    s_add_u32 s29, s31, 0x400")
    A("    s_mov_b32 s31, s28")
    A("    s_mov_b32 s54, 0")
    if beta:
        A("    s_mov_b32 s52, -1")
    A("    s_waitcnt lgkmcnt(0)")
    for j in range(NREF):
        A(f"    s_sub_u32 s{76+j}, s29, s{76+j}" + ("             ; own - reference + 0x400" if j == 0 else ""))
        A(f"    s_add_u32 s53, s{76+j}, 0x10000")
        A(f"    s_cmp_lt_u32 s{76+j}, 0x800" + ("             ; within 10 us: written by this launch" if j == 0 else ""))
        A("    s_cselect_b32 s53, s53, 0")
        A("    s_add_u32 s54, s54, s53")
        if beta:
            A(f"    s_min_u32 s52, s52, s{76+j}")
    A("    s_lshr_b32 s53, s54, 16")
    A("    s_cbranch_scc0 L_keep")
    A(f"    s_cmp_eq_u32 s50, {first}")
    A("    s_cbranch_scc1 L_keep")
    A("    s_and_b32 s54, s54, 0xffff")
    A("    v_cvt_f32_u32 v14, s53")
    A("    v_cvt_f32_u32 v15, s54")
    A("    v_rcp_f32 v14, v14")
    A("    v_cvt_f32_i32 v19, s55")
    A("    v_mul_f32 v14, v14, v15")
    if beta:
        A("    v_cvt_f32_u32 v21, s52")
        A("    v_sub_f32 v21, v21, v14")
    A("    v_add_f32 v14, 0xc4800000, v14")
    A("    v_sub_f32 v15, v14, v18")
    A("    v_add_f32 v15, v15, v19")
    A(f"    s_cmp_le_u32 s50, {first + period}")
    A("    s_cselect_b32 s54, 0, 1.0")
    A("    v_mov_b32 v18, v14")
    A("    v_fma_f32 v14, v15, s54, v14")
    if beta:
        A(f"    v_fmac_f32 v14, {f2u(beta):#x}, v21")
    A("    v_fma_f32 v14, v14, s46, v20")
    A("    v_cvt_i32_f32 v14, v14")
    A("    v_max_i32 v14, 0, v14")
    A(f"    v_min_i32 v14, {(hi-lo)*256}, v14")
    A(f"    ds_write_b32 v{VZ}, v14 offset:{LC}")
    A("L_keep:")
    A(f"    s_cmp_eq_u32 s50, {soft}")
    A("    s_cbranch_scc1 L_soft")
    A("L_back:")
    A(f"    s_add_u32 s50, s50, {period}")
    A(f"    s_cmp_le_u32 s50, {meets[-1]}")
    A("    s_cbranch_scc1 L_meet")
    A("    s_endpgm")
    A("L_soft:")
    for kk in range(4):
        for i in range(8):
            A(f"    ds_read_b32 v{KP+8*kk+i}, v9 offset:{LD+1024*i+16*kk}")
        A("    s_waitcnt lgkmcnt(0)")
    A("    s_waitcnt vmcnt(0)")
    A("    s_mov_b32 s56, 0x3db504f3           ; 128^-0.5")
    A("    s_mov_b32 s57, 0x3fb8aa3b           ; log2(e)")
    A("    s_mov_b32 s58, 0xffff0000")
    for kk in range(4):
        for p in range(4):
            A(f"    v_cvt_pk_bf16_f32 v{KB+4*kk+p}, v{KP+8*kk+2*p}, v{KP+8*kk+2*p+1}")
    A("    s_nop 1")
    for kk in range(4):
        c = "0" if kk == 0 else f"v[{X}:{X+3}]"
        A(f"    v_mfma_f32_16x16x32_bf16 v[{X}:{X+3}], v[{KB+4*kk}:{KB+4*kk+3}], v[{Q+4*kk}:{Q+4*kk+3}], {c}")
    A("    s_nop 7                             ; lane (g, q): S[q][4g .. 4g+3]")

    def rnd():
        A(f"    v_cvt_pk_bf16_f32 v{a}, v{X}, v{X+1}")
        A(f"    v_cvt_pk_bf16_f32 v{b}, v{X+2}, v{X+3}")
        A(f"    v_lshlrev_b32 v{X}, 16, v{a}")
        A(f"    v_and_b32 v{X+1}, s58, v{a}")
        A(f"    v_lshlrev_b32 v{X+2}, 16, v{b}")
        A(f"    v_and_b32 v{X+3}, s58, v{b}")
    rnd()
    for r in range(4):
        A(f"    v_mul_f32 v{X+r}, s56, v{X+r}")
    rnd()

    def xred(op):
        A(f"    v_mov_b32 v{b}, v{a}")
        A("    s_nop 1")
        A(f"    v_permlane16_swap_b32 v{a}, v{b}")
        A(f"    {op} v{a}, v{a}, v{b}")
        A(f"    v_mov_b32 v{b}, v{a}")
        A("    s_nop 1")
        A(f"    v_permlane32_swap_b32 v{a}, v{b}")
        A(f"    {op} v{a}, v{a}, v{b}")
    A(f"    v_max_f32 v{a}, v{X}, v{X+1}")
    A(f"    v_max3_f32 v{a}, v{X+2}, v{X+3}, v{a}")
    xred("v_max_f32")
    for r in range(4):
        A(f"    v_sub_f32 v{X+r}, v{X+r}, v{a}")
    for r in range(4):
        A(f"    v_mul_f32 v{X+r}, s57, v{X+r}")
    for r in range(4):
        A(f"    v_exp_f32 v{X+r}, v{X+r}")
    A("    s_nop 0")
    A(f"    v_add_f32 v{a}, v{X}, v{X+1}")
    A(f"    v_add_f32 v{b}, v{X+2}, v{X+3}")
    A(f"    v_add_f32 v{a}, v{a}, v{b}")
    xred("v_add_f32")
    A(f"    v_rcp_f32 v{a}, v{a}")
    A("    s_nop 0")
    for r in range(4):
        A(f"    v_mul_f32 v{X+r}, v{X+r}, v{a}")
    A(f"    v_cvt_pk_bf16_f32 v{X+6}, v{X}, v{X+1}")
    A(f"    v_cvt_pk_bf16_f32 v{X+7}, v{X+2}, v{X+3}")
    A(f"    ds_write_b64 v4, v[{X+6}:{X+7}] offset:{LP}")
    A("    s_branch L_back")

    A("L_fetch:")
    A("    s_lshl_b32 s48, s2, 11")
    A(f"    s_mov_b32 s49, {wsoff - 64:#x}")
    A("    s_lshl_b32 s62, s62, 12")
    A("    s_waitcnt vmcnt(0)")
    A("    s_load_dword s64, s[8:9], s43")
    A("    s_load_dword s64, s[14:15], s48")
    A("    s_load_dword s64, s[18:19], s49")
    for t, (base, start_reg, n) in enumerate((("s[10:11]", "s62", 4096), ("s[12:13]", "s62", 4096), ("s[4:5]", "s48", 2048))):
        if not (int(fmask) >> t) & 1:
            continue
        A(f"    s_mov_b32 s50, {start_reg}")
        A(f"    s_add_u32 s51, s50, {n}")
        A(f"L_fetch{t}:")
        for k in range(8):
            A(f"    s_load_dword s64, {base}, s50 offset:{64*k}")
        A("    s_add_u32 s50, s50, 512")
        A("    s_cmp_lt_u32 s50, s51")
        A(f"    s_cbranch_scc1 L_fetch{t}")
    A("    s_endpgm")
    A("L_codeend:")
    A(f".if (L_codeend - L_pc) < {NK*1024}")
    A('.error "code prefetch runs past the code"')
    A(".endif")

    A('.section .rodata,"a"')
    A(".p2align 6")
    A(f".amdhsa_kernel {NAME}_kernel")
    A(f"  .amdhsa_next_free_vgpr {total}")
    A("  .amdhsa_next_free_sgpr 88")
    A(f"  .amdhsa_accum_offset {total}")
    A("  .amdhsa_group_segment_fixed_size 0")
    A("  .amdhsa_kernarg_size 64")
    A("  .amdhsa_user_sgpr_count 2")
    A("  .amdhsa_user_sgpr_kernarg_segment_ptr 1")
    A("  .amdhsa_system_sgpr_workgroup_id_x 1")
    A("  .amdhsa_float_denorm_mode_32 3")
    A(".end_amdhsa_kernel")
    return "\n".join(L) + "\n"


if __name__ == "__main__":
    out = sys.argv[1]
    kw = dict(a.split("=", 1) for a in sys.argv[2:])
    open(out, "w").write(gen(**kw))
```

```python
import sys
from math import gcd

NAME = "standalone__low_rank_proj_linformer__sampling"

HEADER = """; Kernarg layout for this problem (64 bytes, ptrs only, base s[0:1]):
"""


def gen(P=12, cache="nt", pcache="", stamp=0, lds=90000, local=0, hmap=0, spin=0, xr="", gmin=0):
    P = int(P); stamp = int(stamp); lds = int(lds); local = int(local); hmap = int(hmap); spin = int(spin)
    L = []
    A = L.append
    U = P * 4 // gcd(P, 4)
    need_e = (P + 3) // 4 + 1
    while U // 4 < need_e:
        U *= 2
    NE = U // 4
    ST = 8
    RING = 40
    nv = RING + 8 * P
    TMP = nv
    nv += 24
    VT = nv
    if stamp:
        nv += 1
    acc_off = (nv + 3) // 4 * 4
    AQ = 32
    AP = 48
    na = AP + 4 * NE
    total = acc_off + na
    assert acc_off <= 256 and total <= 512, (acc_off, total)
    assert 2 * P + NE + 4 <= 63

    A(HEADER + f"; @launch grid=(256,1,1) block=(64,1,1) lds={lds}")
    A('.amdgcn_target "amdgcn-amd-amdhsa--gfx950"')
    A(".text")
    A(f".globl {NAME}_kernel")
    A(".p2align 8")
    A(f".type {NAME}_kernel,@function")
    A(f"{NAME}_kernel:")
    A("    s_load_dwordx8 s[4:11], s[0:1], 0     ; q k v e")
    A("    s_load_dwordx8 s[12:19], s[0:1], 32")
    if stamp:
        A("    s_memrealtime s[60:61]")
        A(f"    v_mov_b32 v{VT}, 0")
    if spin:
        A("    s_memrealtime s[76:77]")
    A("    s_cmp_ge_u32 s2, 256")
    A("    s_cbranch_scc1 L_end")
    if hmap == 1:
        A("    s_and_b32 s3, s2, 7")
        A("    s_lshl_b32 s3, s3, 5")
        A("    s_lshr_b32 s43, s2, 3")
        A("    s_add_u32 s3, s3, s43")
    else:
        A("    s_mov_b32 s3, s2")
    A("    v_lshrrev_b32 v6, 4, v0             ; g")
    A("    v_and_b32 v7, 15, v0                ; c")
    A("    v_lshlrev_b32 v1, 11, v6")
    A("    v_lshl_add_u32 v1, v7, 4, v1")
    A("    v_lshlrev_b32 v2, 13, v7")
    A("    v_lshl_add_u32 v2, v6, 4, v2")
    A("    v_lshlrev_b32 v3, 8, v7")
    A("    v_lshl_add_u32 v3, v6, 6, v3        ; q voffset = c*256 + g*64")
    A("    s_lshl_b32 s43, s3, 20")
    A("    s_lshl_b32 s44, s3, 11")
    A("    s_mov_b32 s22, 0x100000")
    A("    s_mov_b32 s23, 0x20000")
    A("    s_mov_b32 s26, 0x20000")
    A("    s_mov_b32 s27, 0x20000")
    A("    s_mov_b32 s30, 2048")
    A("    s_mov_b32 s31, 0x20000")
    A("    s_mov_b32 s34, 2048")
    A("    s_mov_b32 s35, 0x20000")
    A("    s_mov_b32 s56, 0")
    for k, ch in enumerate(xr):
        if ch != '.':
            A(f"    s_bfe_u32 s58, s2, {int(ch) | (1 << 16)}")
            A(f"    s_lshl_b32 s58, s58, {13+k}")
            A("    s_or_b32 s56, s56, s58")
    A("    s_mov_b32 s57, 0")
    if local:
        A("    s_lshr_b32 s51, s2, 3")
        A("    s_lshl_b32 s51, s51, 2")
        A("    s_and_b32 s52, s2, 3")
        A("    s_add_u32 s51, s51, s52            ; pair")
        A("    s_lshl_b32 s43, s51, 21")
        A("    s_lshl_b32 s50, s51, 1")
        A("    s_and_b32 s52, s50, 0xfffffffc")
        A("    s_add_u32 s52, s52, 0x100000")
        A("    s_getreg_b32 s54, hwreg(HW_REG_XCC_ID)")
        A("    s_lshr_b32 s54, s54, 2")
        A("    s_and_b32 s50, s50, 3")
        A("    s_lshl_b32 s50, s50, 3")
        A("    s_mov_b32 s22, 0x200000")
    A("    s_waitcnt lgkmcnt(0)")
    if local:
        A("    s_load_dword s53, s[18:19], s52")
        A("    s_add_u32 s52, s52, 256")
        A("    s_load_dword s55, s[18:19], s52")
        A("    s_waitcnt lgkmcnt(0)")
        A("    s_lshr_b32 s53, s53, s50")
        A("    s_xor_b32 s53, s53, s54")
        A("    s_and_b32 s53, s53, 1              ; parity K")
        A("    s_lshr_b32 s55, s55, s50")
        A("    s_xor_b32 s55, s55, s54")
        A("    s_and_b32 s55, s55, 1              ; parity V")
        A("    s_lshl_b32 s57, s53, 13")
    A("    s_add_u32 s20, s6, s43")
    A("    s_addc_u32 s21, s7, 0")
    A("    s_mov_b32 s24, s10")
    A("    s_mov_b32 s25, s11")

    cf = (" " + cache) if cache else ""
    pf = (" " + pcache) if pcache else ""
    dstep = 16384 if local else 8192
    estep = 128 if local else 64

    def issue(u, first=False):
        p = u % 4
        if p == 0:
            if not first:
                A(f"    s_add_u32 s57, s57, {dstep}")
            A("    s_xor_b32 s39, s57, s56")
            A("    s_bfe_u32 s40, s39, 0xd0007      ; (off >> 7) & 8191")
            r = AP + 4 * ((u // 4) % NE)
            A(f"    buffer_load_dwordx4 a[{r}:{r+3}], v2, s[24:27], s40 offen{pf}")
        r = RING + 8 * (u % P)
        for h in range(2):
            o = 512 * p + 256 * h
            off = f" offset:{o}" if o else ""
            A(f"    buffer_load_dwordx4 v[{r+4*h}:{r+4*h+3}], v1, s[20:23], s39 offen{off}{cf}")

    def nwait(s, extra=0):
        return 2 * (P - 1) + sum(1 for u in range(s + 1, s + P) if u % 4 == 0) + extra

    def perms(s):
        p = s % 4
        r = RING + 8 * (s % P)
        for i in range(8):
            sel = "s38" if (i & 1) else "s37"
            A(f"    v_perm_b32 v{ST+4*i+p}, v{r+4+(i>>1)}, v{r+(i>>1)}, {sel}")

    def mfmas(s, isv, zero=False):
        pa = AP + 4 * ((s // 4) % NE)
        for i in range(8):
            t = ST + 4 * i
            c = "0" if zero else f"a[{4*i}:{4*i+3}]"
            if isv:
                A(f"    v_mfma_f32_16x16x32_bf16 a[{4*i}:{4*i+3}], a[{pa}:{pa+3}], v[{t}:{t+3}], {c}")
            else:
                A(f"    v_mfma_f32_16x16x32_bf16 a[{4*i}:{4*i+3}], v[{t}:{t+3}], a[{pa}:{pa+3}], {c}")

    def step(s, isv, do_issue=True, extra=0, hook=None, wait=None):
        A(f"    s_waitcnt vmcnt({nwait(s, extra) if wait is None else wait})")
        perms(s)
        if hook:
            hook()
        if do_issue:
            issue(s + P)
        elif s % 4 == 3:
            A("    s_nop 1")
        if s % 4 == 3:
            mfmas(s, isv)

    for u in range(P):
        issue(u, first=(u == 0))
        if u == 0:
            A("    s_mov_b32 s37, 0x05040100")
            A("    s_mov_b32 s38, 0x07060302")
    for i in range(32):
        A(f"    v_accvgpr_write_b32 a{i}, 0")
    A("    s_add_u32 s28, s4, s44")
    A("    s_addc_u32 s29, s5, 0")
    A("    s_add_u32 s32, s14, s44")
    A("    s_addc_u32 s33, s15, 0")
    if stamp:
        A("    s_memrealtime s[68:69]")
        A(f"    s_waitcnt vmcnt({nwait(0)})")
        A("    s_memrealtime s[70:71]")
        A("    s_mov_b32 s74, 0")

    S = 512

    def trace():
        if stamp:
            A("    s_memrealtime s[72:73]")
            A("    s_waitcnt lgkmcnt(0)")
            A("    s_sub_u32 s72, s72, s60")
            A("    s_mov_b32 m0, s74")
            A("    s_add_u32 s74, s74, 1")
            A("    s_nop 4")
            A(f"    v_writelane_b32 v{VT}, s72, m0")

    def loop(tag, s0, nsteps, isv):
        s = s0
        while s % U and nsteps:
            step(s, isv); s += 1; nsteps -= 1
        it = nsteps // U
        if it:
            A(f"    s_mov_b32 s47, {it}")
            A(f"L_loop_{tag}:")
            for k in range(U):
                step(s + k, isv)
            if stamp:
                tr_every = max(1, 32 // U)
                if tr_every > 1:
                    A(f"    s_and_b32 s75, s47, {tr_every-1}")
                    A(f"    s_cbranch_scc1 L_notr_{tag}")
                trace()
                A(f"L_notr_{tag}:")
            A("    s_sub_u32 s47, s47, 1")
            A("    s_cmp_lg_u32 s47, 0")
            A(f"    s_cbranch_scc1 L_loop_{tag}")
            s += it * U; nsteps -= it * U
        while nsteps:
            step(s, isv); s += 1; nsteps -= 1
        return s

    s = loop("k", 0, S - P, False)
    A("    s_add_u32 s20, s8, s43")
    A("    s_addc_u32 s21, s9, 0")
    A("    s_mov_b32 s24, s12")
    A("    s_mov_b32 s25, s13")
    if local:
        A("    s_lshl_b32 s57, s55, 13")
        A(f"    s_sub_u32 s57, s57, {dstep}")
    else:
        A(f"    s_mov_b32 s57, {-dstep & 0xffffffff}")
    for kk in range(4):
        r = AQ + 4 * kk
        off = f" offset:{16*kk}" if kk else ""
        A(f"    buffer_load_dwordx4 a[{r}:{r+3}], v3, s[28:31], 0 offen{off}")
    while s < S:
        step(s, False, extra=4)
        s += 1

    T = TMP
    A("    s_nop 7")
    for i in range(32):
        A(f"    v_accvgpr_read_b32 v{ST+i}, a{i}")
    for kk in range(4):
        for p in range(4):
            A(f"    v_cvt_pk_bf16_f32 v{T+4*kk+p}, v{ST+4*(2*p)+kk}, v{ST+4*(2*p+1)+kk}")
    for i in range(32):
        A(f"    v_accvgpr_write_b32 a{i}, 0")
    A(f"    s_waitcnt vmcnt({2*P + sum(1 for u in range(S, S+P) if u % 4 == 0)})")
    X = T + 16
    for kk in range(4):
        c = "0" if kk == 0 else f"v[{X}:{X+3}]"
        A(f"    v_mfma_f32_16x16x32_bf16 v[{X}:{X+3}], v[{T+4*kk}:{T+4*kk+3}], a[{AQ+4*kk}:{AQ+4*kk+3}], {c}")
    A("    s_mov_b32 s46, 0x3db504f3          ; 128^-0.5")
    A("    s_mov_b32 s48, 0x3fb8aa3b          ; log2(e)")
    A("    s_mov_b32 s49, 0xffff0000")
    A("    s_nop 5")
    a, b = X + 4, X + 5

    def rnd():
        A(f"    v_cvt_pk_bf16_f32 v{a}, v{X}, v{X+1}")
        A(f"    v_cvt_pk_bf16_f32 v{b}, v{X+2}, v{X+3}")
        A(f"    v_lshlrev_b32 v{X}, 16, v{a}")
        A(f"    v_and_b32 v{X+1}, s49, v{a}")
        A(f"    v_lshlrev_b32 v{X+2}, 16, v{b}")
        A(f"    v_and_b32 v{X+3}, s49, v{b}")
    rnd()
    for r in range(4):
        A(f"    v_mul_f32 v{X+r}, s46, v{X+r}")
    rnd()

    def xred(op):
        A(f"    v_mov_b32 v{b}, v{a}")
        A("    s_nop 1")
        A(f"    v_permlane16_swap_b32 v{a}, v{b}")
        A(f"    {op} v{a}, v{a}, v{b}")
        A(f"    v_mov_b32 v{b}, v{a}")
        A("    s_nop 1")
        A(f"    v_permlane32_swap_b32 v{a}, v{b}")
        A(f"    {op} v{a}, v{a}, v{b}")
    A(f"    v_max_f32 v{a}, v{X}, v{X+1}")
    A(f"    v_max3_f32 v{a}, v{X+2}, v{X+3}, v{a}")
    xred("v_max_f32")
    for r in range(4):
        A(f"    v_sub_f32 v{X+r}, v{X+r}, v{a}")
    for r in range(4):
        A(f"    v_mul_f32 v{X+r}, s48, v{X+r}")
    for r in range(4):
        A(f"    v_exp_f32 v{X+r}, v{X+r}")
    A("    s_nop 0")
    A(f"    v_add_f32 v{a}, v{X}, v{X+1}")
    A(f"    v_add_f32 v{b}, v{X+2}, v{X+3}")
    A(f"    v_add_f32 v{a}, v{a}, v{b}")
    xred("v_add_f32")
    A(f"    v_rcp_f32 v{a}, v{a}")
    A("    s_nop 0")
    for r in range(4):
        A(f"    v_mul_f32 v{X+r}, v{X+r}, v{a}")
    PR = X + 6
    A(f"    v_cvt_pk_bf16_f32 v{PR}, v{X}, v{X+1}")
    A(f"    v_cvt_pk_bf16_f32 v{PR+1}, v{X+2}, v{X+3}")
    A("    v_lshlrev_b32 v5, 10, v6")
    A("    v_lshl_add_u32 v5, v7, 4, v5")

    s = loop("v", S, S - P, True)
    left = 2 * S - s
    while s < 2 * S:
        w = 2 * (2 * S - 1 - s) + sum(1 for u in range(s + 1, 2 * S) if u % 4 == 0)
        step(s, True, do_issue=False, wait=w)
        s += 1
    if stamp:
        A("    s_memrealtime s[62:63]")
    for i in range(8):
        if i == 0:
            A("    s_nop 0")
        for r in range(4):
            A(f"    v_accvgpr_read_b32 v{ST+4*i+r}, a{4*i+r}")
        if i == 0:
            pass
    for i in range(8):
        A(f"    v_cvt_pk_bf16_f32 v{T+2*i}, v{ST+4*i}, v{ST+4*i+1}")
        A(f"    v_cvt_pk_bf16_f32 v{T+2*i+1}, v{ST+4*i+2}, v{ST+4*i+3}")
    A("    s_nop 1")
    for i in range(8):
        A(f"    v_mfma_f32_16x16x16_bf16 v[{ST+4*i}:{ST+4*i+3}], v[{PR}:{PR+1}], v[{T+2*i}:{T+2*i+1}], 0")
    A("    s_nop 7")
    for r in range(4):
        for p in range(4):
            A(f"    v_cvt_pk_bf16_f32 v{RING+4*r+p}, v{ST+4*(2*p)+r}, v{ST+4*(2*p+1)+r}")
        off = f" offset:{256*r}" if r else ""
        A(f"    buffer_store_dwordx4 v[{RING+4*r}:{RING+4*r+3}], v5, s[32:35], 0 offen{off}")
    if stamp:
        A("    s_waitcnt vmcnt(0)")
        A("    s_memrealtime s[64:65]")
        A("    s_getreg_b32 s66, hwreg(HW_REG_XCC_ID)")
        A("    s_getreg_b32 s67, hwreg(HW_REG_HW_ID)")
        A("    s_waitcnt lgkmcnt(0)")
        A("    s_lshl_b32 s46, s2, 6")
        for i in range(12):
            A(f"    v_mov_b32 v{8+i}, s{60+i}")
        A("    v_mov_b32 v4, s46")
        A("    s_lshl_b32 s47, s46, 2")
        A("    s_add_u32 s47, s47, 0x200000")
        A("    v_lshl_add_u32 v5, v0, 2, s47")
        A(f"    global_store_dword v5, v{VT}, s[18:19]")
        A("    s_mov_b64 exec, 1")
        A("    global_store_dwordx4 v4, v[8:11], s[18:19]")
        A("    global_store_dwordx4 v4, v[12:15], s[18:19] offset:16")
        A("    global_store_dwordx4 v4, v[16:19], s[18:19] offset:32")
    if spin:
        A("    s_waitcnt vmcnt(0)")
        A("    s_memrealtime s[72:73]")
        A("    s_waitcnt lgkmcnt(0)")
        A("    s_sub_u32 s72, s72, s76")
        A("    v_mov_b32 v4, 0")
        A("    v_mov_b32 v5, s72")
        A("    s_mov_b64 exec, 1")
        A("    global_atomic_umax v4, v5, s[16:17]")
        if int(gmin):
            A("    s_not_b32 s73, s76")
            A("    v_mov_b32 v5, s73")
            A("    global_atomic_umax v4, v5, s[16:17] offset:4")
            A("    v_mov_b32 v5, s76")
            A("    global_atomic_umax v4, v5, s[16:17] offset:8")
            A("L_spin0:")
            A("    s_memrealtime s[72:73]")
            A("    s_waitcnt lgkmcnt(0)")
            A("    s_sub_u32 s72, s72, s76")
            A(f"    s_cmp_lt_u32 s72, {spin - 1000}")
            A("    s_cbranch_scc1 L_spin0")
            A("    global_load_dword v5, v4, s[16:17] offset:4 sc1")
            A("    s_waitcnt vmcnt(0)")
            A("    v_readfirstlane_b32 s76, v5")
            A("    s_not_b32 s76, s76")
        A("L_spin:")
        A("    s_memrealtime s[72:73]")
        A("    s_waitcnt lgkmcnt(0)")
        A("    s_sub_u32 s72, s72, s76")
        A(f"    s_cmp_lt_u32 s72, {spin}")
        A("    s_cbranch_scc1 L_spin")
    A("L_end:")
    A("    s_endpgm")
    A('.section .rodata,"a"')
    A(".p2align 6")
    A(f".amdhsa_kernel {NAME}_kernel")
    A(f"  .amdhsa_next_free_vgpr {total}")
    A("  .amdhsa_next_free_sgpr 80")
    A(f"  .amdhsa_accum_offset {acc_off}")
    A("  .amdhsa_group_segment_fixed_size 0")
    A("  .amdhsa_kernarg_size 64")
    A("  .amdhsa_user_sgpr_count 2")
    A("  .amdhsa_user_sgpr_kernarg_segment_ptr 1")
    A("  .amdhsa_system_sgpr_workgroup_id_x 1")
    A("  .amdhsa_float_denorm_mode_32 3")
    A(".end_amdhsa_kernel")
    return "\n".join(L) + "\n"


if __name__ == "__main__":
    out = sys.argv[1]
    kw = dict(a.split("=", 1) for a in sys.argv[2:])
    open(out, "w").write(gen(**kw))
```

```python
import sys
import struct

NAME = "standalone__low_rank_proj_linformer__sampling"

HEADER = """; Kernarg layout for this problem (64 bytes, ptrs only, base s[0:1]):
"""

DOC = """;
;
;
"""


def f2u(x):
    return struct.unpack("<I", struct.pack("<f", x))[0]


def gen(d0=10.7, dinit=11, kp=3.0, beta=0.0, period=2, first=9, last=61, stamp=0, lds=90000,
        wsoff=0x1000, xr="....3.210", ofl="", topt=1, cache="nt", ecache="", emask=15, fmask=6, qfl="", xtab=0, chain=0, lo=9, hi=12, nk=11, ft=0):
    d0 = float(d0); kp = float(kp); beta = float(beta); dinit = float(dinit)
    period = int(period); first = int(first); last = int(last); stamp = int(stamp); lds = int(lds)
    wsoff = int(str(wsoff), 0); topt = int(topt)
    L = []
    A = L.append
    U = 16
    lo, hi = int(lo), int(hi)
    chain = int(chain)
    D = hi
    levels = list(range(lo, hi + 1))
    G0, G1 = 13, 16
    BP = (11, 12)
    if chain:
        BP = (15, 11)
    skip = (1 << G0) | (1 << G1) | (1 << BP[0]) | (1 << BP[1])
    bp_of = (lambda u: ((u // 8 % 2) * 2 + u % 2, (u % 8) // 2)) if chain else (lambda u: ((u // 4) % 4, u % 4))
    has_e = lambda u: bp_of(u)[1] == 3
    NREF = 8
    ST = 8
    VA = 40
    RING = 72
    EP = RING + 8 * U
    VZ, VD = 216, 217
    VT = 218
    ST2 = 220
    total = 252
    LD = 0
    LP = 8192
    LC = LP + 512
    assert lds >= LC + 64
    meets = list(range(first, last + 1, period))
    soft = min(c for c in meets if c >= 33)
    assert meets[0] < 32 and meets[-1] > soft and meets[-1] <= 63
    dmask = sum(1 << x for x in meets)
    bmask = (1 << 32) | (1 << 63)
    fx = lambda d: int(round((d - lo) * 256))

    A(HEADER + f"; @launch grid=(256,1,1) block=(128,1,1) lds={lds}")
    A(DOC.rstrip("\n"))
    A('.amdgcn_target "amdgcn-amd-amdhsa--gfx950"')
    A(".text")
    A(f".globl {NAME}_kernel")
    A(".p2align 8")
    A(f".type {NAME}_kernel,@function")
    A(f"{NAME}_kernel:")
    A("    s_load_dwordx16 s[4:19], s[0:1], 0")
    if stamp:
        A("    s_memrealtime s[60:61]")
        A(f"    v_mov_b32 v{VT}, 0")
    A("    s_cmp_ge_u32 s2, 256")
    A("    s_cbranch_scc1 L_end")
    A("    v_readfirstlane_b32 s36, v0")
    A("    v_and_b32 v0, 63, v0                ; lane")
    A("    v_lshrrev_b32 v6, 4, v0             ; g")
    A("    v_and_b32 v7, 15, v0                ; c")
    A("    s_lshl_b32 s43, s2, 20")
    A("    s_mov_b32 s27, 0x20000")
    NK = int(nk)
    A("    s_cmp_eq_u32 s36, 0")
    A("    s_cbranch_scc1 L_stream")
    A("    s_getpc_b64 s[58:59]")
    A("L_pc:")
    A("    s_lshr_b32 s62, s2, 3")
    A(f"    s_mul_i32 s63, s62, {NK}")
    A("    s_lshr_b32 s63, s63, 5")
    A("    s_lshl_b32 s63, s63, 10")
    A("    v_lshl_add_u32 v8, v0, 4, s63")
    A("    global_load_dwordx4 v[12:15], v8, s[58:59]")
    A("    s_branch L_helper")
    A("L_stream:")
    A("    v_and_b32 v3, 1, v6")
    A("    v_lshrrev_b32 v4, 1, v6")
    A(f"    v_lshlrev_b32 v1, {G0}, v3")
    A(f"    v_lshl_add_u32 v1, v4, {G1}, v1")
    A("    v_lshrrev_b32 v2, 7, v1")
    A("    v_lshl_add_u32 v1, v7, 4, v1")
    A("    v_lshl_add_u32 v2, v7, 13, v2")
    A("    s_mov_b32 s22, 0x200000")
    A("    s_mov_b32 s23, 0x20000")
    A("    s_mov_b32 s26, 0x20000")
    A("    s_mov_b32 s57, 0")
    if xr == "....3.210":
        A("    s_brev_b32 s56, s2")
        A("    s_lshr_b32 s58, s56, 13")
        A("    s_and_b32 s58, s58, 0x8000")
        A("    s_lshr_b32 s56, s56, 12")
        A("    s_and_b32 s56, s56, 0xe0000")
        A("    s_or_b32 s56, s56, s58")
    else:
        A("    s_mov_b32 s56, 0")
        for k, ch in enumerate(xr):
            if ch != '.':
                A(f"    s_bfe_u32 s58, s2, {int(ch) | (1 << 16):#x}")
                A(f"    s_lshl_b32 s58, s58, {11+k}")
                A("    s_or_b32 s56, s56, s58")
    A("    s_mov_b32 s39, s56")
    A("    s_waitcnt lgkmcnt(0)")
    if int(xtab):
        A("    s_lshl_b32 s58, s2, 3")
        A("    s_add_u32 s58, s58, 0x180000")
        A("    s_load_dwordx2 s[56:57], s[18:19], s58")
        A("    s_waitcnt lgkmcnt(0)")
        A("    s_mov_b32 s39, s56")
        A("    s_lshl_b32 s43, s57, 20")
        A("    s_mov_b32 s57, 0")
    A("    s_add_u32 s20, s6, s43")
    A("    s_addc_u32 s21, s7, 0")
    A("    s_mov_b64 s[24:25], s[10:11]")

    def issue(u, first=False):
        blk, p = bp_of(u)
        if u % U == 0:
            if not first:
                A(f"    s_or_b32 s57, s57, {skip:#x}")
                A("    s_add_u32 s57, s57, 0x800")
                A(f"    s_and_b32 s57, s57, {~skip & 0xffffffff:#x}")
                A("    s_cmp_ge_u32 s57, 0x100000")
                A("    s_cselect_b64 s[20:21], s[44:45], s[20:21]")
                A("    s_cselect_b64 s[24:25], s[12:13], s[24:25]")
                A("    s_xor_b32 s39, s57, s56")
        else:
            d = 0
            for k in range(2):
                if ((blk ^ bp_of(u - 1)[0]) >> k) & 1:
                    d |= 1 << BP[k]
            if d:
                A(f"    s_xor_b32 s39, s39, {d:#x}")
        if p == 3:
            A("    s_bfe_u32 s40, s39, 0xd0007")
            r = EP + 4 * blk
            A(f"    buffer_load_dwordx4 v[{r}:{r+3}], v2, s[24:27], s40 offen{' ' + ecache if ecache and (int(emask) >> blk) & 1 else ''}")
        r = RING + 8 * (u % U)
        for h in range(2):
            o = 512 * p + 256 * h
            off = f" offset:{o}" if o else ""
            A(f"    buffer_load_dwordx4 v[{r+4*h}:{r+4*h+3}], v1, s[20:23], s39 offen{off} {cache}")

    def nwait(s, dm):
        return 2 * (dm - 1) + sum(1 for u in range(s + D - dm + 1, s + D) if has_e(u))

    def perm(i, s, st):
        r = RING + 8 * (s % U)
        return f"    v_perm_b32 v{st+4*i+bp_of(s)[1]}, v{r+4+(i>>1)}, v{r+(i>>1)}, {'s38' if i & 1 else 's37'}"

    def mfma(i, st, blk):
        pa = EP + 4 * (blk % 4)
        c = VA + 4 * i
        return f"    v_mfma_f32_16x16x32_bf16 v[{c}:{c+3}], v[{pa}:{pa+3}], v[{st+4*i}:{st+4*i+3}], v[{c}:{c+3}]"

    def body(m, br):
        A(f"; ---- one pass with {m} slots in flight")
        A(f"L_body_{m}:")
        for s in range(U):
            A(f"    s_waitcnt vmcnt({nwait(s, m)})")
            issue(s + D)
            for i in range(8):
                if chain:
                    A(perm(i, s, ST if s % 2 else ST2))
                    if s in (7, 15):
                        A(mfma(i, ST2, bp_of(s)[0] - 1))
                    if s == 8:
                        A(mfma(i, ST, 1))
                else:
                    A(perm(i, s, ST))
            if s == 13:
                A(f"    ds_read_b32 v{VD}, v{VZ} offset:{LC}")
            if s == 15:
                A("    s_waitcnt lgkmcnt(0)")
                A(f"    v_readfirstlane_b32 s49, v{VD}")
            if s % 4 == 3 and (not chain or s == 15):
                for i in range(8):
                    A(mfma(i, ST, s // 4))
        if br:
            A("    s_branch L_next")

    for u in range(D):
        issue(u, first=(u == 0))
    A("    s_mov_b32 s37, 0x05040100")
    A("    s_mov_b32 s38, 0x07060302")
    A("    s_add_u32 s44, s8, s43")
    A("    s_addc_u32 s45, s9, 0")
    A("    s_sub_u32 s44, s44, 0x100000")
    A("    s_subb_u32 s45, s45, 0")
    A("    s_lshl_b32 s48, s2, 11")
    A("    s_add_u32 s32, s14, s48")
    A("    s_addc_u32 s33, s15, 0")
    A("    s_mov_b32 s35, 0x20000")
    A("    s_mov_b32 s34, 2048")
    A(f"    s_mov_b32 s52, {dmask & 0xffffffff:#x}")
    A(f"    s_mov_b32 s53, {dmask >> 32:#x}")
    A(f"    s_mov_b32 s54, {bmask & 0xffffffff:#x}")
    A(f"    s_mov_b32 s55, {bmask >> 32:#x}")
    A("    s_mov_b32 s50, 0")
    A("    s_mov_b32 s51, 128")
    A("    v_lshlrev_b32 v3, 4, v0             ; lane*16")
    A("    v_lshlrev_b32 v4, 3, v0             ; lane*8")
    A("    v_lshlrev_b32 v5, 10, v6")
    A("    v_lshl_add_u32 v5, v7, 4, v5")
    A(f"    v_mov_b32 v{VZ}, 0")
    A(f"    v_mov_b32 v{VD}, {fx(dinit)}")
    A(f"    ds_write_b32 v{VZ}, v{VD} offset:{LC}")
    for i in range(0, 32, 2):
        A(f"    v_pk_mov_b32 v[{VA+i}:{VA+i+1}], 0, 0")
    if stamp:
        A("    s_memrealtime s[68:69]")
        A(f"    s_waitcnt vmcnt({nwait(0, D)})")
        A("    s_memrealtime s[70:71]")
        A("    s_mov_b32 s74, 0")
        A("    s_waitcnt lgkmcnt(0)")
    start = int(round(dinit))
    order = [start] + sorted([m for m in levels if m != start], key=lambda m: abs(m - d0))
    body(order[0], False)
    A("L_next:")
    if stamp:
        A("    s_and_b32 s75, s50, 1")
        A("    s_cbranch_scc0 L_notr")
        A("    s_memrealtime s[72:73]")
        A("    s_waitcnt lgkmcnt(0)")
        A("    s_sub_u32 s72, s72, s60")
        A("    s_mov_b32 m0, s74")
        A("    s_add_u32 s74, s74, 1")
        A("    s_nop 4")
        A(f"    v_writelane_b32 v{VT}, s72, m0")
        A("L_notr:")
    A("    s_add_u32 s50, s50, 1")
    A("    s_bitcmp0_b64 s[52:53], s50")
    A("    s_cbranch_scc1 L_nomeet")
    A("    s_barrier")
    A("L_nomeet:")
    A("    s_bitcmp1_b64 s[54:55], s50")
    A("    s_cbranch_scc1 L_slow")
    A("L_sel:")
    A("    s_and_b32 s51, s51, 255")
    A("    s_add_u32 s51, s51, s49")
    A("L_disp:")
    for m in levels[:-1]:
        A(f"    s_cmp_lt_u32 s51, {256*(m-lo+1)}")
        A(f"    s_cbranch_scc1 L_body_{m}")
    A(f"    s_branch L_body_{hi}")
    A("L_slow:")
    A("    s_cmp_eq_u32 s50, 63")
    A("    s_cbranch_scc1 L_last")
    for i in range(8):
        A(f"    ds_write_b128 v3, v[{VA+4*i}:{VA+4*i+3}] offset:{LD+1024*i}")
    for i in range(0, 32, 2):
        A(f"    v_pk_mov_b32 v[{VA+i}:{VA+i+1}], 0, 0")
    A("    s_branch L_sel")
    for m in order[1:]:
        body(m, True)

    A("L_last:")
    PR = VZ
    A(f"    ds_read_b64 v[{PR}:{PR+1}], v4 offset:{LP}")
    for s in range(U):
        if s + D < U:
            n = nwait(s, D)
        else:
            n = 2 * (U - 1 - s) + sum(1 for u in range(s + 1, U) if has_e(u))
        A(f"    s_waitcnt vmcnt({n})" + (" lgkmcnt(0)" if s == 8 else ""))
        if s + D < U:
            issue(s + D)
        blk, p = s // 4, s % 4
        cur, prv = (ST, ST2) if blk % 2 else (ST2, ST)
        if s == U - 1:
            break
        if chain:
            for i in range(8):
                A(perm(i, s, ST if s % 2 else ST2))
                if s == 7:
                    A(mfma(i, ST2, 0))
                if s == 8:
                    A(mfma(i, ST, 1))
            if s == 14:
                for i in range(8):
                    A(mfma(i, ST2, 2))
            continue
        for i in range(8):
            A(perm(i, s, cur))
            if blk and p < 3:
                lst = [x for x in range(8) if x // 3 == p]
                if i % 3 == 0 and i // 3 < len(lst):
                    A(mfma(lst[i // 3], prv, blk - 1))
    VB = ST2
    OB = ST2 + 16
    cv1 = lambda i, h: f"    v_cvt_pk_bf16_f32 v{VB+2*i+h}, v{VA+4*i+2*h}, v{VA+4*i+2*h+1}"
    mm2 = lambda i: f"    v_mfma_f32_16x16x16_bf16 v[{VA+4*i}:{VA+4*i+3}], v[{PR}:{PR+1}], v[{VB+2*i}:{VB+2*i+1}], 0"
    cv2 = lambda p, r: f"    v_cvt_pk_bf16_f32 v{OB+4*r+p}, v{VA+4*(2*p)+r}, v{VA+4*(2*p+1)+r}"
    ops = {}
    for i in range(8):
        ops[f"P{i}"] = (perm(i, U - 1, ST), [])
        ops[f"M{i}"] = (mfma(i, ST, 3), [(f"P{i}", 3)])
        for h in range(2):
            ops[f"C{i}{h}"] = (cv1(i, h), [(f"M{i}", 9)])
        ops[f"N{i}"] = (mm2(i), [(f"C{i}0", 3), (f"C{i}1", 3), (f"M{i}", 9)])
    for p in range(4):
        for r in range(4):
            ops[f"O{p}{r}"] = (cv2(p, r), [(f"N{2*p}", 9), (f"N{2*p+1}", 9)])
    if topt:
        mseq = [f"M{i}" for i in range(8)] + [f"N{i}" for i in range(8)]
        vseq = [f"P{i}" for i in range(8)] + [f"C{i}{h}" for i in range(8) for h in range(2)] + \
               [f"O{p}{r}" for p in range(4) for r in range(4)]
    else:
        mseq = []
        vseq = [f"P{i}" for i in range(8)] + [f"M{i}" for i in range(8)] + \
               [f"C{i}{h}" for i in range(8) for h in range(2)] + [f"N{i}" for i in range(8)] + \
               [f"O{p}{r}" for p in range(4) for r in range(4)]
    pos = {}
    slot = 0
    since_m = 99
    ready = lambda n: all(d in pos and slot - pos[d] >= k for d, k in ops[n][1])
    while mseq or vseq:
        pick = None
        if mseq and ready(mseq[0]) and (since_m >= 2 or not (vseq and ready(vseq[0]))):
            pick = mseq.pop(0); since_m = -1
        elif vseq and ready(vseq[0]):
            pick = vseq.pop(0)
        if pick is None:
            A("    s_nop 0")
        else:
            A(ops[pick][0])
            pos[pick] = slot
        slot += 1
        since_m += 1
    for r in range(4):
        off = f" offset:{256*r}" if r else ""
        A(f"    buffer_store_dwordx4 v[{OB+4*r}:{OB+4*r+3}], v5, s[32:35], 0 offen{off}{' ' + ofl if ofl else ''}")
    if stamp:
        A("    s_memrealtime s[62:63]")
        A("    s_waitcnt vmcnt(0)")
        A("    s_memrealtime s[64:65]")
        A("    s_getreg_b32 s66, hwreg(HW_REG_XCC_ID)")
        A("    s_getreg_b32 s67, hwreg(HW_REG_HW_ID)")
        A("    s_waitcnt lgkmcnt(0)")
        A("    s_lshl_b32 s76, s2, 6")
        for i in range(12):
            A(f"    v_mov_b32 v{8+i}, s{60+i}")
        A("    v_mov_b32 v4, s76")
        A("    s_lshl_b32 s77, s76, 2")
        A("    s_add_u32 s77, s77, 0x200000")
        A("    v_lshl_add_u32 v5, v0, 2, s77")
        A(f"    global_store_dword v5, v{VT}, s[18:19]")
        A("    s_mov_b64 exec, 1")
        A("    global_store_dwordx4 v4, v[8:11], s[18:19]")
        A("    global_store_dwordx4 v4, v[12:15], s[18:19] offset:16")
        A("    global_store_dwordx4 v4, v[16:19], s[18:19] offset:32")
    A("L_end:")
    A("    s_endpgm")

    A("L_helper:")
    Q = RING
    KP = RING + 16
    KB = RING + 48
    X = RING + 64
    a, b = X + 4, X + 5
    A(f"    v_mov_b32 v{VZ}, 0")
    A("    v_lshlrev_b32 v4, 3, v0             ; lane*8")
    A("    s_lshl_b32 s48, s2, 11")
    A(f"    s_mov_b32 s49, {wsoff - 64:#x}")
    A("    s_lshl_b32 s62, s62, 12")
    A("    s_waitcnt vmcnt(0) lgkmcnt(0)")
    A("    s_load_dword s64, s[8:9], s43")
    A("    s_load_dword s64, s[12:13], 0")
    A("    s_load_dword s64, s[14:15], s48")
    A("    s_load_dword s64, s[18:19], s49")
    for t, (base, start_reg, n) in enumerate((("s[10:11]", "s62", 4096), ("s[12:13]", "s62", 4096), ("s[4:5]", "s48", 2048))):
        if not (int(fmask) >> t) & 1:
            continue
        A(f"    s_mov_b32 s50, {start_reg}")
        A(f"    s_add_u32 s51, s50, {n}")
        A(f"L_fetch{t}:")
        for k in range(8):
            A(f"    s_load_dword s64, {base}, s50 offset:{64*k}")
        A("    s_add_u32 s50, s50, 512")
        A("    s_cmp_lt_u32 s50, s51")
        A(f"    s_cbranch_scc1 L_fetch{t}")
    if int(ft) & 1:
        A("    s_mov_b32 s50, 0")
        A("L_ft:")
        for k in range(8):
            A(f"    s_load_dword s64, s[12:13], s50 offset:{4096*k}")
        A("    s_add_u32 s50, s50, 0x8000")
        A("    s_cmp_lt_u32 s50, 0x20000")
        A("    s_cbranch_scc1 L_ft")
    if int(ft) & 4:
        A("    s_brev_b32 s56, s2")
        A("    s_lshr_b32 s58, s56, 20")
        A("    s_and_b32 s58, s58, 0x100")
        A("    s_lshr_b32 s56, s56, 19")
        A("    s_and_b32 s56, s56, 0x1c00")
        A("    s_or_b32 s50, s56, s58")
        A("    s_bfe_u32 s51, s2, 0x40004")
        A("    s_lshl_b32 s51, s51, 13")
        A("    s_add_u32 s50, s50, s51")
        for k in (0, 64, 128, 192, 512, 576, 640, 704):
            A(f"    s_load_dword s64, s[12:13], s50 offset:{k}")
    A("    s_add_u32 s24, s4, s48")
    A("    s_addc_u32 s25, s5, 0")
    A("    s_mov_b32 s26, 2048")
    A("    v_lshlrev_b32 v9, 8, v7")
    A("    v_lshl_add_u32 v9, v6, 6, v9")
    A("    v_mov_b32 v10, s43")
    A("    v_mov_b32 v11, s48")
    A("    s_waitcnt lgkmcnt(0)")
    for kk in range(4):
        off = f" offset:{16*kk}" if kk else ""
        A(f"    buffer_load_dwordx4 v[{Q+4*kk}:{Q+4*kk+3}], v9, s[24:27], 0 offen{off}{' ' + qfl if qfl else ''}")
    A("    global_load_dword v16, v10, s[8:9]")
    if int(ft) & 2:
        A("    v_and_b32 v12, 31, v0")
        A("    v_lshlrev_b32 v12, 12, v12")
        A("    global_load_dword v16, v12, s[12:13]")
    else:
        A(f"    global_load_dword v16, v{VZ}, s[12:13]")
    A("    global_load_dword v16, v11, s[14:15]")
    A("    v_lshrrev_b32 v9, 2, v7")
    A("    v_lshlrev_b32 v9, 8, v9             ;   (r>>2)*256 + g*64 + (r&3)*4")
    A("    v_lshl_add_u32 v9, v6, 6, v9")
    A("    v_and_b32 v11, 3, v7")
    A("    v_lshl_add_u32 v9, v11, 2, v9")
    A(f"    s_mov_b32 s50, {first}")
    A(f"    s_add_u32 s62, s18, {wsoff:#x}")
    A("    s_addc_u32 s63, s19, 0")
    A("    s_lshl_b32 s59, s2, 7")
    A("    v_mov_b32 v13, s59")
    A("    s_mov_b32 s31, 0")
    A("    s_mov_b32 s30, 0")
    A("    v_mov_b32 v18, 0")
    A(f"    s_mov_b32 s46, {f2u(kp * 256 / 100):#x}")
    A(f"    v_mov_b32 v20, {f2u(float(fx(d0))):#x}")
    A("L_meet:")
    A("    s_waitcnt lgkmcnt(0)")
    A("    s_barrier")
    A("    s_memrealtime s[28:29]")
    A("    s_waitcnt lgkmcnt(0)")
    for j in range(NREF):
        A(f"    s_load_dword s{76+j}, s[62:63], {128*j - 1024}" + ("   ; reference arrivals at the previous meeting" if j == 0 else ""))
    A(f"    s_cmp_ge_u32 s2, {NREF}")
    A("    s_cbranch_scc1 L_noref")
    A("    v_mov_b32 v15, s28")
    A("    s_mov_b64 exec, 1")
    A("    global_store_dword v13, v15, s[62:63] sc1")
    A("    s_mov_b64 exec, -1")
    A("L_noref:")
    A("    s_add_u32 s62, s62, 1024")
    A("    s_addc_u32 s63, s63, 0")
    A("    s_sub_u32 s29, s28, s31")
    A("    s_sub_u32 s55, s29, s30")
    A("    s_mov_b32 s30, s29")
    A("    s_add_u32 s29, s31, 0x400")
    A("    s_mov_b32 s31, s28")
    A("    s_mov_b32 s54, 0")
    if beta:
        A("    s_mov_b32 s52, -1")
    A("    s_waitcnt lgkmcnt(0)")
    for j in range(NREF):
        A(f"    s_sub_u32 s{76+j}, s29, s{76+j}" + ("             ; own - reference + 0x400" if j == 0 else ""))
        A(f"    s_add_u32 s53, s{76+j}, 0x10000")
        A(f"    s_cmp_lt_u32 s{76+j}, 0x800" + ("             ; within 10 us: written by this launch" if j == 0 else ""))
        A("    s_cselect_b32 s53, s53, 0")
        A("    s_add_u32 s54, s54, s53")
        if beta:
            A(f"    s_min_u32 s52, s52, s{76+j}")
    A("    s_lshr_b32 s53, s54, 16")
    A("    s_cbranch_scc0 L_keep")
    A(f"    s_cmp_eq_u32 s50, {first}")
    A("    s_cbranch_scc1 L_keep")
    A("    s_and_b32 s54, s54, 0xffff")
    A("    v_cvt_f32_u32 v14, s53")
    A("    v_cvt_f32_u32 v15, s54")
    A("    v_rcp_f32 v14, v14")
    A("    v_cvt_f32_i32 v19, s55")
    A("    v_mul_f32 v14, v14, v15")
    if beta:
        A("    v_cvt_f32_u32 v21, s52")
        A("    v_sub_f32 v21, v21, v14")
    A("    v_add_f32 v14, 0xc4800000, v14")
    A("    v_sub_f32 v15, v14, v18")
    A("    v_add_f32 v15, v15, v19")
    A(f"    s_cmp_le_u32 s50, {first + period}")
    A("    s_cselect_b32 s54, 0, 1.0")
    A("    v_mov_b32 v18, v14")
    A("    v_fma_f32 v14, v15, s54, v14")
    if beta:
        A(f"    v_fmac_f32 v14, {f2u(beta):#x}, v21")
    A("    v_fma_f32 v14, v14, s46, v20")
    A("    v_cvt_i32_f32 v14, v14")
    A("    v_max_i32 v14, 0, v14")
    A(f"    v_min_i32 v14, {(hi-lo)*256}, v14")
    A(f"    ds_write_b32 v{VZ}, v14 offset:{LC}")
    A("L_keep:")
    A(f"    s_cmp_eq_u32 s50, {soft}")
    A("    s_cbranch_scc1 L_soft")
    A("L_back:")
    A(f"    s_add_u32 s50, s50, {period}")
    A(f"    s_cmp_le_u32 s50, {meets[-1]}")
    A("    s_cbranch_scc1 L_meet")
    A("    s_endpgm")
    A("L_soft:")
    for kk in range(4):
        for i in range(8):
            A(f"    ds_read_b32 v{KP+8*kk+i}, v9 offset:{LD+1024*i+16*kk}")
        A("    s_waitcnt lgkmcnt(0)")
    A("    s_waitcnt vmcnt(0)")
    A("    s_mov_b32 s56, 0x3db504f3           ; 128^-0.5")
    A("    s_mov_b32 s57, 0x3fb8aa3b           ; log2(e)")
    A("    s_mov_b32 s58, 0xffff0000")
    for kk in range(4):
        for p in range(4):
            A(f"    v_cvt_pk_bf16_f32 v{KB+4*kk+p}, v{KP+8*kk+2*p}, v{KP+8*kk+2*p+1}")
    A("    s_nop 1")
    for kk in range(4):
        c = "0" if kk == 0 else f"v[{X}:{X+3}]"
        A(f"    v_mfma_f32_16x16x32_bf16 v[{X}:{X+3}], v[{KB+4*kk}:{KB+4*kk+3}], v[{Q+4*kk}:{Q+4*kk+3}], {c}")
    A("    s_nop 7                             ; lane (g, q): S[q][4g .. 4g+3]")

    def rnd():
        A(f"    v_cvt_pk_bf16_f32 v{a}, v{X}, v{X+1}")
        A(f"    v_cvt_pk_bf16_f32 v{b}, v{X+2}, v{X+3}")
        A(f"    v_lshlrev_b32 v{X}, 16, v{a}")
        A(f"    v_and_b32 v{X+1}, s58, v{a}")
        A(f"    v_lshlrev_b32 v{X+2}, 16, v{b}")
        A(f"    v_and_b32 v{X+3}, s58, v{b}")
    rnd()
    for r in range(4):
        A(f"    v_mul_f32 v{X+r}, s56, v{X+r}")
    rnd()

    def xred(op):
        A(f"    v_mov_b32 v{b}, v{a}")
        A("    s_nop 1")
        A(f"    v_permlane16_swap_b32 v{a}, v{b}")
        A(f"    {op} v{a}, v{a}, v{b}")
        A(f"    v_mov_b32 v{b}, v{a}")
        A("    s_nop 1")
        A(f"    v_permlane32_swap_b32 v{a}, v{b}")
        A(f"    {op} v{a}, v{a}, v{b}")
    A(f"    v_max_f32 v{a}, v{X}, v{X+1}")
    A(f"    v_max3_f32 v{a}, v{X+2}, v{X+3}, v{a}")
    xred("v_max_f32")
    for r in range(4):
        A(f"    v_sub_f32 v{X+r}, v{X+r}, v{a}")
    for r in range(4):
        A(f"    v_mul_f32 v{X+r}, s57, v{X+r}")
    for r in range(4):
        A(f"    v_exp_f32 v{X+r}, v{X+r}")
    A("    s_nop 0")
    A(f"    v_add_f32 v{a}, v{X}, v{X+1}")
    A(f"    v_add_f32 v{b}, v{X+2}, v{X+3}")
    A(f"    v_add_f32 v{a}, v{a}, v{b}")
    xred("v_add_f32")
    A(f"    v_rcp_f32 v{a}, v{a}")
    A("    s_nop 0")
    for r in range(4):
        A(f"    v_mul_f32 v{X+r}, v{X+r}, v{a}")
    A(f"    v_cvt_pk_bf16_f32 v{X+6}, v{X}, v{X+1}")
    A(f"    v_cvt_pk_bf16_f32 v{X+7}, v{X+2}, v{X+3}")
    A(f"    ds_write_b64 v4, v[{X+6}:{X+7}] offset:{LP}")
    A("    s_branch L_back")

    A("L_codeend:")
    A(f".if (L_codeend - L_pc) < {NK*1024}")
    A('.error "code prefetch runs past the code"')
    A(".endif")

    A('.section .rodata,"a"')
    A(".p2align 6")
    A(f".amdhsa_kernel {NAME}_kernel")
    A(f"  .amdhsa_next_free_vgpr {total}")
    A("  .amdhsa_next_free_sgpr 88")
    A(f"  .amdhsa_accum_offset {total}")
    A("  .amdhsa_group_segment_fixed_size 0")
    A("  .amdhsa_kernarg_size 64")
    A("  .amdhsa_user_sgpr_count 2")
    A("  .amdhsa_user_sgpr_kernarg_segment_ptr 1")
    A("  .amdhsa_system_sgpr_workgroup_id_x 1")
    A("  .amdhsa_float_denorm_mode_32 3")
    A(".end_amdhsa_kernel")
    return "\n".join(L) + "\n"


if __name__ == "__main__":
    out = sys.argv[1]
    kw = dict(a.split("=", 1) for a in sys.argv[2:])
    open(out, "w").write(gen(**kw))
```

```python
import sys
import struct

NAME = "standalone__low_rank_proj_linformer__sampling"

HEADER = """; Kernarg layout for this problem (64 bytes, ptrs only, base s[0:1]):
"""

DOC = """;
;
;
"""


def f2u(x):
    return struct.unpack("<I", struct.pack("<f", x))[0]


def gen(d0=10.7, dinit=11, kp=2.6, beta=0.0, period=2, first=7, last=61, stamp=0, lds=90000,
        wsoff=0x1000, xr="....3.210", ofl="", topt=1, cache="nt", ecache="", emask=15, fmask=6, qfl="", xtab=0, chain=0, lo=9, hi=12, nk=11, ft=0, spread=0, gq=1, qoff=0, ring=0, ema=0.0, eclamp=8.0, pw=1.0, swap=0):
    d0 = float(d0); kp = float(kp); beta = float(beta); dinit = float(dinit)
    period = int(period); first = int(first); last = int(last); stamp = int(stamp); lds = int(lds)
    wsoff = int(str(wsoff), 0); topt = int(topt)
    L = []
    A = L.append
    U = 16
    lo, hi = int(lo), int(hi)
    chain = int(chain)
    gq = int(gq); qoff = int(qoff)
    D = int(ring) or hi
    levels = list(range(lo, hi + 1))
    G0, G1 = 13, 16
    BP = (11, 12)
    if chain:
        BP = (15, 11)
    skip = (1 << G0) | (1 << G1) | (1 << BP[0]) | (1 << BP[1])
    bp_of = (lambda u: ((u // 8 % 2) * 2 + u % 2, (u % 8) // 2)) if chain else (lambda u: ((u // 4) % 4, u % 4))
    has_e = lambda u: bp_of(u)[1] == 3
    NREF = 8
    ST = 8
    VA = 40
    RING = 72
    EP = RING + 8 * U
    VZ, VD = 216, 217
    VT = 218
    ST2 = 220
    total = 252
    LD = 0
    LP = 8192
    LC = LP + 512
    assert lds >= LC + 64
    meets = list(range(first, last + 1, period))
    soft = min(c for c in meets if c >= 33)
    assert meets[0] < 32 and meets[-1] > soft and meets[-1] <= 63
    dmask = sum(1 << x for x in meets)
    bmask = (1 << 32) | (1 << 63)
    fx = lambda d: int(round((d - lo) * 256))

    A(HEADER + f"; @launch grid=(256,1,1) block=(128,1,1) lds={lds}")
    A(DOC.rstrip("\n"))
    A('.amdgcn_target "amdgcn-amd-amdhsa--gfx950"')
    A(".text")
    A(f".globl {NAME}_kernel")
    A(".p2align 8")
    A(f".type {NAME}_kernel,@function")
    A(f"{NAME}_kernel:")
    A("    s_load_dwordx16 s[4:19], s[0:1], 0")
    if stamp:
        A("    s_memrealtime s[60:61]")
        A(f"    v_mov_b32 v{VT}, 0")
    A("    s_cmp_ge_u32 s2, 256")
    A("    s_cbranch_scc1 L_end")
    A("    v_readfirstlane_b32 s36, v0")
    A("    v_and_b32 v0, 63, v0                ; lane")
    A("    v_lshrrev_b32 v6, 4, v0             ; g")
    A("    v_and_b32 v7, 15, v0                ; c")
    A("    s_lshl_b32 s43, s2, 20")
    A("    s_mov_b32 s27, 0x20000")
    NK = int(nk)
    A("    s_cmp_eq_u32 s36, 0")
    A("    s_cbranch_scc1 L_stream")
    A("    s_getpc_b64 s[58:59]")
    A("L_pc:")
    A("    s_lshr_b32 s62, s2, 3")
    A(f"    s_mul_i32 s63, s62, {NK}")
    A("    s_lshr_b32 s63, s63, 5")
    A("    s_lshl_b32 s63, s63, 10")
    A("    v_lshl_add_u32 v8, v0, 4, s63")
    A("    global_load_dwordx4 v[12:15], v8, s[58:59]")
    A("    s_branch L_helper")
    A("L_stream:")
    A("    v_and_b32 v3, 1, v6")
    A("    v_lshrrev_b32 v4, 1, v6")
    A(f"    v_lshlrev_b32 v1, {G0}, v3")
    A(f"    v_lshl_add_u32 v1, v4, {G1}, v1")
    A("    v_lshrrev_b32 v2, 7, v1")
    A("    v_lshl_add_u32 v1, v7, 4, v1")
    A("    v_lshl_add_u32 v2, v7, 13, v2")
    A("    s_mov_b32 s22, 0x200000")
    A("    s_mov_b32 s23, 0x20000")
    A("    s_mov_b32 s26, 0x20000")
    A("    s_mov_b32 s57, 0")
    if xr == "....3.210":
        A("    s_brev_b32 s56, s2")
        A("    s_lshr_b32 s58, s56, 13")
        A("    s_and_b32 s58, s58, 0x8000")
        A("    s_lshr_b32 s56, s56, 12")
        A("    s_and_b32 s56, s56, 0xe0000")
        A("    s_or_b32 s56, s56, s58")
    else:
        A("    s_mov_b32 s56, 0")
        for k, ch in enumerate(xr):
            if ch != '.':
                A(f"    s_bfe_u32 s58, s2, {int(ch) | (1 << 16):#x}")
                A(f"    s_lshl_b32 s58, s58, {11+k}")
                A("    s_or_b32 s56, s56, s58")
    A("    s_mov_b32 s39, s56")
    A("    s_waitcnt lgkmcnt(0)")
    if int(xtab):
        A("    s_lshl_b32 s58, s2, 3")
        A("    s_add_u32 s58, s58, 0x180000")
        A("    s_load_dwordx2 s[56:57], s[18:19], s58")
        A("    s_waitcnt lgkmcnt(0)")
        A("    s_mov_b32 s39, s56")
        A("    s_lshl_b32 s43, s57, 20")
        A("    s_mov_b32 s57, 0")
    if int(swap) & 1:
        A("    s_mov_b64 s[20:21], s[6:7]")
        A("    s_mov_b64 s[6:7], s[8:9]")
        A("    s_mov_b64 s[8:9], s[20:21]")
    if int(swap) & 2:
        A("    s_mov_b64 s[10:11], s[12:13]")
    A("    s_add_u32 s20, s6, s43")
    A("    s_addc_u32 s21, s7, 0")
    A("    s_mov_b64 s[24:25], s[10:11]")

    def issue(u, first=False):
        blk, p = bp_of(u)
        if u % U == 0:
            if not first:
                A(f"    s_or_b32 s57, s57, {skip:#x}")
                A("    s_add_u32 s57, s57, 0x800")
                A(f"    s_and_b32 s57, s57, {~skip & 0xffffffff:#x}")
                A("    s_cmp_ge_u32 s57, 0x100000")
                A("    s_cselect_b64 s[20:21], s[44:45], s[20:21]")
                A("    s_cselect_b64 s[24:25], s[12:13], s[24:25]")
                A("    s_xor_b32 s39, s57, s56")
        else:
            d = 0
            for k in range(2):
                if ((blk ^ bp_of(u - 1)[0]) >> k) & 1:
                    d |= 1 << BP[k]
            if d:
                A(f"    s_xor_b32 s39, s39, {d:#x}")
        if p == 3:
            A("    s_bfe_u32 s40, s39, 0xd0007")
            r = EP + 4 * blk
            A(f"    buffer_load_dwordx4 v[{r}:{r+3}], v2, s[24:27], s40 offen{' ' + ecache if ecache and (int(emask) >> blk) & 1 else ''}")
        r = RING + 8 * (u % U)
        for h in range(2):
            o = 512 * p + 256 * h
            off = f" offset:{o}" if o else ""
            A(f"    buffer_load_dwordx4 v[{r+4*h}:{r+4*h+3}], v1, s[20:23], s39 offen{off} {cache}")

    def count(lastpair, need, maxdata=None):
        n = nd = 0
        u = lastpair
        while u > need:
            for k in ('d', 'd') + (('e',) if has_e(u) else ()):
                if k == 'd':
                    if maxdata is not None and nd >= maxdata:
                        return n
                    nd += 1
                n += 1
            u -= 1
        return n

    def nwait(s, dm):
        if s % gq == 0:
            return count(s + D - 1, s, 2 * dm - gq - 1 + qoff)
        return count(s - s % gq + D + gq - 1, s)

    def issue_group(s):
        if s % gq == 0:
            for k in range(gq):
                issue(s + D + k)

    def perm(i, s, st):
        r = RING + 8 * (s % U)
        return f"    v_perm_b32 v{st+4*i+bp_of(s)[1]}, v{r+4+(i>>1)}, v{r+(i>>1)}, {'s38' if i & 1 else 's37'}"

    def mfma(i, st, blk):
        pa = EP + 4 * (blk % 4)
        c = VA + 4 * i
        return f"    v_mfma_f32_16x16x32_bf16 v[{c}:{c+3}], v[{pa}:{pa+3}], v[{st+4*i}:{st+4*i+3}], v[{c}:{c+3}]"

    def body(m, br):
        A(f"; ---- one pass with {m} slots in flight")
        A(f"L_body_{m}:")
        for s in range(U):
            A(f"    s_waitcnt vmcnt({nwait(s, m)})")
            issue_group(s)
            for i in range(8):
                if chain:
                    A(perm(i, s, ST if s % 2 else ST2))
                    if s in (7, 15):
                        A(mfma(i, ST2, bp_of(s)[0] - 1))
                    if s == 8:
                        A(mfma(i, ST, 1))
                elif int(spread):
                    blk, p = s // 4, s % 4
                    cur, prv = (ST, ST2) if blk % 2 else (ST2, ST)
                    A(perm(i, s, cur))
                    if blk:
                        if int(spread) == 1:
                            lst = [x for x in range(8) if x // 3 == p]
                            if i % 3 == 0 and i // 3 < len(lst):
                                A(mfma(lst[i // 3], prv, blk - 1))
                        elif int(spread) == 2:
                            lst = {0: [0, 1], 1: [2, 3, 4, 5], 2: [6, 7], 3: []}[p]
                            st = 8 // max(1, len(lst))
                            if lst and i % st == 0:
                                A(mfma(lst[i // st], prv, blk - 1))
                    if s == 15 and i >= 2:
                        A(mfma(i - 2, ST, 3))
                else:
                    A(perm(i, s, ST))
            if s == 13:
                A(f"    ds_read_b32 v{VD}, v{VZ} offset:{LC}")
            if s == 15:
                A("    s_waitcnt lgkmcnt(0)")
                A(f"    v_readfirstlane_b32 s49, v{VD}")
            if s % 4 == 3 and (not (chain or int(spread)) or s == 15):
                for i in range(6 if int(spread) else 0, 8):
                    A(mfma(i, ST, s // 4))
        if br:
            A("    s_branch L_next")

    for u in range(D):
        issue(u, first=(u == 0))
    A("    s_mov_b32 s37, 0x05040100")
    A("    s_mov_b32 s38, 0x07060302")
    A("    s_add_u32 s44, s8, s43")
    A("    s_addc_u32 s45, s9, 0")
    A("    s_sub_u32 s44, s44, 0x100000")
    A("    s_subb_u32 s45, s45, 0")
    A("    s_lshl_b32 s48, s2, 11")
    A("    s_add_u32 s32, s14, s48")
    A("    s_addc_u32 s33, s15, 0")
    A("    s_mov_b32 s35, 0x20000")
    A("    s_mov_b32 s34, 2048")
    A(f"    s_mov_b32 s52, {dmask & 0xffffffff:#x}")
    A(f"    s_mov_b32 s53, {dmask >> 32:#x}")
    A(f"    s_mov_b32 s54, {bmask & 0xffffffff:#x}")
    A(f"    s_mov_b32 s55, {bmask >> 32:#x}")
    A("    s_mov_b32 s50, 0")
    A("    s_mov_b32 s51, 128")
    A("    v_lshlrev_b32 v3, 4, v0             ; lane*16")
    A("    v_lshlrev_b32 v4, 3, v0             ; lane*8")
    A("    v_lshlrev_b32 v5, 10, v6")
    A("    v_lshl_add_u32 v5, v7, 4, v5")
    A(f"    v_mov_b32 v{VZ}, 0")
    A(f"    v_mov_b32 v{VD}, {fx(dinit)}")
    A(f"    ds_write_b32 v{VZ}, v{VD} offset:{LC}")
    for i in range(0, 32, 2):
        A(f"    v_pk_mov_b32 v[{VA+i}:{VA+i+1}], 0, 0")
    if stamp:
        A("    s_memrealtime s[68:69]")
        A(f"    s_waitcnt vmcnt({nwait(0, hi)})")
        A("    s_memrealtime s[70:71]")
        A("    s_mov_b32 s74, 0")
        A("    s_waitcnt lgkmcnt(0)")
    start = int(round(dinit))
    order = [start] + sorted([m for m in levels if m != start], key=lambda m: abs(m - d0))
    body(order[0], False)
    A("L_next:")
    if stamp:
        A("    s_and_b32 s75, s50, 1")
        A("    s_cbranch_scc0 L_notr")
        A("    s_memrealtime s[72:73]")
        A("    s_waitcnt lgkmcnt(0)")
        A("    s_sub_u32 s72, s72, s60")
        A("    s_mov_b32 m0, s74")
        A("    s_add_u32 s74, s74, 1")
        A("    s_nop 4")
        A(f"    v_writelane_b32 v{VT}, s72, m0")
        A("L_notr:")
    A("    s_add_u32 s50, s50, 1")
    A("    s_bitcmp0_b64 s[52:53], s50")
    A("    s_cbranch_scc1 L_nomeet")
    A("    s_barrier")
    A("L_nomeet:")
    A("    s_bitcmp1_b64 s[54:55], s50")
    A("    s_cbranch_scc1 L_slow")
    A("L_sel:")
    A("    s_and_b32 s51, s51, 255")
    A("    s_add_u32 s51, s51, s49")
    A("L_disp:")
    for m in levels[:-1]:
        A(f"    s_cmp_lt_u32 s51, {256*(m-lo+1)}")
        A(f"    s_cbranch_scc1 L_body_{m}")
    A(f"    s_branch L_body_{hi}")
    A("L_slow:")
    A("    s_cmp_eq_u32 s50, 63")
    A("    s_cbranch_scc1 L_last")
    for i in range(8):
        A(f"    ds_write_b128 v3, v[{VA+4*i}:{VA+4*i+3}] offset:{LD+1024*i}")
    for i in range(0, 32, 2):
        A(f"    v_pk_mov_b32 v[{VA+i}:{VA+i+1}], 0, 0")
    A("    s_branch L_sel")
    for m in order[1:]:
        body(m, True)

    A("L_last:")
    PR = VZ
    A(f"    ds_read_b64 v[{PR}:{PR+1}], v4 offset:{LP}")
    for s in range(U):
        if s + D < U:
            n = nwait(s, hi)
        else:
            n = 2 * (U - 1 - s) + sum(1 for u in range(s + 1, U) if has_e(u))
        A(f"    s_waitcnt vmcnt({n})" + (" lgkmcnt(0)" if s == 8 else ""))
        if s + D < U:
            issue_group(s)
        blk, p = s // 4, s % 4
        cur, prv = (ST, ST2) if blk % 2 else (ST2, ST)
        if s == U - 1:
            break
        if chain:
            for i in range(8):
                A(perm(i, s, ST if s % 2 else ST2))
                if s == 7:
                    A(mfma(i, ST2, 0))
                if s == 8:
                    A(mfma(i, ST, 1))
            if s == 14:
                for i in range(8):
                    A(mfma(i, ST2, 2))
            continue
        for i in range(8):
            A(perm(i, s, cur))
            if blk and p < 3:
                lst = [x for x in range(8) if x // 3 == p]
                if i % 3 == 0 and i // 3 < len(lst):
                    A(mfma(lst[i // 3], prv, blk - 1))
    VB = ST2
    OB = ST2 + 16
    cv1 = lambda i, h: f"    v_cvt_pk_bf16_f32 v{VB+2*i+h}, v{VA+4*i+2*h}, v{VA+4*i+2*h+1}"
    mm2 = lambda i: f"    v_mfma_f32_16x16x16_bf16 v[{VA+4*i}:{VA+4*i+3}], v[{PR}:{PR+1}], v[{VB+2*i}:{VB+2*i+1}], 0"
    cv2 = lambda p, r: f"    v_cvt_pk_bf16_f32 v{OB+4*r+p}, v{VA+4*(2*p)+r}, v{VA+4*(2*p+1)+r}"
    ops = {}
    for i in range(8):
        ops[f"P{i}"] = (perm(i, U - 1, ST), [])
        ops[f"M{i}"] = (mfma(i, ST, 3), [(f"P{i}", 3)])
        for h in range(2):
            ops[f"C{i}{h}"] = (cv1(i, h), [(f"M{i}", 9)])
        ops[f"N{i}"] = (mm2(i), [(f"C{i}0", 3), (f"C{i}1", 3), (f"M{i}", 9)])
    for p in range(4):
        for r in range(4):
            ops[f"O{p}{r}"] = (cv2(p, r), [(f"N{2*p}", 9), (f"N{2*p+1}", 9)])
    if topt:
        mseq = [f"M{i}" for i in range(8)] + [f"N{i}" for i in range(8)]
        vseq = [f"P{i}" for i in range(8)] + [f"C{i}{h}" for i in range(8) for h in range(2)] + \
               [f"O{p}{r}" for p in range(4) for r in range(4)]
    else:
        mseq = []
        vseq = [f"P{i}" for i in range(8)] + [f"M{i}" for i in range(8)] + \
               [f"C{i}{h}" for i in range(8) for h in range(2)] + [f"N{i}" for i in range(8)] + \
               [f"O{p}{r}" for p in range(4) for r in range(4)]
    pos = {}
    slot = 0
    since_m = 99
    ready = lambda n: all(d in pos and slot - pos[d] >= k for d, k in ops[n][1])
    while mseq or vseq:
        pick = None
        if mseq and ready(mseq[0]) and (since_m >= 2 or not (vseq and ready(vseq[0]))):
            pick = mseq.pop(0); since_m = -1
        elif vseq and ready(vseq[0]):
            pick = vseq.pop(0)
        if pick is None:
            A("    s_nop 0")
        else:
            A(ops[pick][0])
            pos[pick] = slot
        slot += 1
        since_m += 1
    for r in range(4):
        off = f" offset:{256*r}" if r else ""
        A(f"    buffer_store_dwordx4 v[{OB+4*r}:{OB+4*r+3}], v5, s[32:35], 0 offen{off}{' ' + ofl if ofl else ''}")
    if stamp:
        A("    s_memrealtime s[62:63]")
        A("    s_waitcnt vmcnt(0)")
        A("    s_memrealtime s[64:65]")
        A("    s_getreg_b32 s66, hwreg(HW_REG_XCC_ID)")
        A("    s_getreg_b32 s67, hwreg(HW_REG_HW_ID)")
        A("    s_waitcnt lgkmcnt(0)")
        A("    s_lshl_b32 s76, s2, 6")
        for i in range(12):
            A(f"    v_mov_b32 v{8+i}, s{60+i}")
        A("    v_mov_b32 v4, s76")
        A("    s_lshl_b32 s77, s76, 2")
        A("    s_add_u32 s77, s77, 0x200000")
        A("    v_lshl_add_u32 v5, v0, 2, s77")
        A(f"    global_store_dword v5, v{VT}, s[18:19]")
        A("    s_mov_b64 exec, 1")
        A("    global_store_dwordx4 v4, v[8:11], s[18:19]")
        A("    global_store_dwordx4 v4, v[12:15], s[18:19] offset:16")
        A("    global_store_dwordx4 v4, v[16:19], s[18:19] offset:32")
    A("L_end:")
    A("    s_endpgm")

    A("L_helper:")
    Q = RING
    KP = RING + 16
    KB = RING + 48
    X = RING + 64
    a, b = X + 4, X + 5
    A(f"    v_mov_b32 v{VZ}, 0")
    A("    v_lshlrev_b32 v4, 3, v0             ; lane*8")
    A("    s_lshl_b32 s48, s2, 11")
    A(f"    s_mov_b32 s49, {wsoff - 64:#x}")
    A("    s_lshl_b32 s62, s62, 12")
    A("    s_waitcnt vmcnt(0) lgkmcnt(0)")
    A("    s_load_dword s64, s[8:9], s43")
    A("    s_load_dword s64, s[12:13], 0")
    A("    s_load_dword s64, s[14:15], s48")
    A("    s_load_dword s64, s[18:19], s49")
    for t, (base, start_reg, n) in enumerate((("s[10:11]", "s62", 4096), ("s[12:13]", "s62", 4096), ("s[4:5]", "s48", 2048))):
        if not (int(fmask) >> t) & 1:
            continue
        A(f"    s_mov_b32 s50, {start_reg}")
        A(f"    s_add_u32 s51, s50, {n}")
        A(f"L_fetch{t}:")
        for k in range(8):
            A(f"    s_load_dword s64, {base}, s50 offset:{64*k}")
        A("    s_add_u32 s50, s50, 512")
        A("    s_cmp_lt_u32 s50, s51")
        A(f"    s_cbranch_scc1 L_fetch{t}")
    if int(ft) & 1:
        A("    s_mov_b32 s50, 0")
        A("L_ft:")
        for k in range(8):
            A(f"    s_load_dword s64, s[12:13], s50 offset:{4096*k}")
        A("    s_add_u32 s50, s50, 0x8000")
        A("    s_cmp_lt_u32 s50, 0x20000")
        A("    s_cbranch_scc1 L_ft")
    if int(ft) & 4:
        A("    s_brev_b32 s56, s2")
        A("    s_lshr_b32 s58, s56, 20")
        A("    s_and_b32 s58, s58, 0x100")
        A("    s_lshr_b32 s56, s56, 19")
        A("    s_and_b32 s56, s56, 0x1c00")
        A("    s_or_b32 s50, s56, s58")
        A("    s_bfe_u32 s51, s2, 0x40004")
        A("    s_lshl_b32 s51, s51, 13")
        A("    s_add_u32 s50, s50, s51")
        for k in (0, 64, 128, 192, 512, 576, 640, 704):
            A(f"    s_load_dword s64, s[12:13], s50 offset:{k}")
    A("    s_add_u32 s24, s4, s48")
    A("    s_addc_u32 s25, s5, 0")
    A("    s_mov_b32 s26, 2048")
    A("    v_lshlrev_b32 v9, 8, v7")
    A("    v_lshl_add_u32 v9, v6, 6, v9")
    A("    v_mov_b32 v10, s43")
    A("    v_mov_b32 v11, s48")
    A("    s_waitcnt lgkmcnt(0)")
    for kk in range(4):
        off = f" offset:{16*kk}" if kk else ""
        A(f"    buffer_load_dwordx4 v[{Q+4*kk}:{Q+4*kk+3}], v9, s[24:27], 0 offen{off}{' ' + qfl if qfl else ''}")
    A("    global_load_dword v16, v10, s[8:9]")
    if int(ft) & 2:
        A("    v_and_b32 v12, 31, v0")
        A("    v_lshlrev_b32 v12, 12, v12")
        A("    global_load_dword v16, v12, s[12:13]")
    else:
        A(f"    global_load_dword v16, v{VZ}, s[12:13]")
    A("    global_load_dword v16, v11, s[14:15]")
    A("    v_lshrrev_b32 v9, 2, v7")
    A("    v_lshlrev_b32 v9, 8, v9             ;   (r>>2)*256 + g*64 + (r&3)*4")
    A("    v_lshl_add_u32 v9, v6, 6, v9")
    A("    v_and_b32 v11, 3, v7")
    A("    v_lshl_add_u32 v9, v11, 2, v9")
    A(f"    s_mov_b32 s50, {first}")
    A(f"    s_add_u32 s62, s18, {wsoff:#x}")
    A("    s_addc_u32 s63, s19, 0")
    A("    s_lshl_b32 s59, s2, 7")
    A("    v_mov_b32 v13, s59")
    A("    s_mov_b32 s31, 0")
    A("    s_mov_b32 s30, 0")
    A("    v_mov_b32 v18, 0")
    if float(ema):
        A("    v_mov_b32 v22, 0")
    A(f"    s_mov_b32 s46, {f2u(kp * 256 / 100):#x}")
    A(f"    v_mov_b32 v20, {f2u(float(fx(d0))):#x}")
    A("L_meet:")
    A("    s_waitcnt lgkmcnt(0)")
    A("    s_barrier")
    A("    s_memrealtime s[28:29]")
    A("    s_waitcnt lgkmcnt(0)")
    for j in range(NREF):
        A(f"    s_load_dword s{76+j}, s[62:63], {128*j - 1024}" + ("   ; reference arrivals at the previous meeting" if j == 0 else ""))
    A(f"    s_cmp_ge_u32 s2, {NREF}")
    A("    s_cbranch_scc1 L_noref")
    A("    v_mov_b32 v15, s28")
    A("    s_mov_b64 exec, 1")
    A("    global_store_dword v13, v15, s[62:63] sc1")
    A("    s_mov_b64 exec, -1")
    A("L_noref:")
    A("    s_add_u32 s62, s62, 1024")
    A("    s_addc_u32 s63, s63, 0")
    A("    s_sub_u32 s29, s28, s31")
    A("    s_mov_b32 s55, s30" if float(ema) else "    s_sub_u32 s55, s29, s30")
    A("    s_mov_b32 s30, s29")
    A("    s_add_u32 s29, s31, 0x400")
    A("    s_mov_b32 s31, s28")
    A("    s_mov_b32 s54, 0")
    if beta:
        A("    s_mov_b32 s52, -1")
    A("    s_waitcnt lgkmcnt(0)")
    for j in range(NREF):
        A(f"    s_sub_u32 s{76+j}, s29, s{76+j}" + ("             ; own - reference + 0x400" if j == 0 else ""))
        A(f"    s_add_u32 s53, s{76+j}, 0x10000")
        A(f"    s_cmp_lt_u32 s{76+j}, 0x800" + ("             ; within 10 us: written by this launch" if j == 0 else ""))
        A("    s_cselect_b32 s53, s53, 0")
        A("    s_add_u32 s54, s54, s53")
        if beta:
            A(f"    s_min_u32 s52, s52, s{76+j}")
    A("    s_lshr_b32 s53, s54, 16")
    A("    s_cbranch_scc0 L_keep")
    A(f"    s_cmp_eq_u32 s50, {first}")
    A("    s_cbranch_scc1 L_keep")
    A("    s_and_b32 s54, s54, 0xffff")
    A("    v_cvt_f32_u32 v14, s53")
    A("    v_cvt_f32_u32 v15, s54")
    A("    v_rcp_f32 v14, v14")
    A("    v_cvt_f32_i32 v19, s55")
    A("    v_mul_f32 v14, v14, v15")
    if beta:
        A("    v_cvt_f32_u32 v21, s52")
        A("    v_sub_f32 v21, v21, v14")
    A("    v_add_f32 v14, 0xc4800000, v14")
    if float(ema):
        A("    v_sub_f32 v15, v14, v18")
        A("    v_sub_f32 v15, v19, v15")
        A("    v_sub_f32 v24, v15, v22")
        A(f"    v_max_f32 v24, {f2u(-float(eclamp)):#x}, v24")
        A(f"    v_min_f32 v24, {f2u(float(eclamp)):#x}, v24")
        A(f"    v_fmac_f32 v22, {f2u(float(ema)):#x}, v24")
        A(f"    s_cmp_le_u32 s50, {first + 2*period}")
        A("    s_cselect_b64 vcc, -1, 0")
        A("    v_cvt_f32_u32 v23, s30")
        A("    v_cndmask_b32 v22, v22, v15, vcc")
        A("    v_sub_f32 v15, v23, v22")
        A(f"    s_cmp_le_u32 s50, {first + period}")
        A(f"    s_cselect_b32 s54, 0, {f2u(float(pw)):#x}")
        A("    v_mov_b32 v18, v14")
        A("    v_fma_f32 v14, v15, s54, v14")
    else:
        A("    v_sub_f32 v15, v14, v18")
        A("    v_add_f32 v15, v15, v19")
        A(f"    s_cmp_le_u32 s50, {first + period}")
        A("    s_cselect_b32 s54, 0, " + ("1.0" if float(pw) == 1 else f"{f2u(float(pw)):#x}"))
        A("    v_mov_b32 v18, v14")
        A("    v_fma_f32 v14, v15, s54, v14")
    if beta:
        A(f"    v_fmac_f32 v14, {f2u(beta):#x}, v21")
    A("    v_fma_f32 v14, v14, s46, v20")
    A("    v_cvt_i32_f32 v14, v14")
    A("    v_max_i32 v14, 0, v14")
    A(f"    v_min_i32 v14, {(hi-lo)*256}, v14")
    A(f"    ds_write_b32 v{VZ}, v14 offset:{LC}")
    A("L_keep:")
    A(f"    s_cmp_eq_u32 s50, {soft}")
    A("    s_cbranch_scc1 L_soft")
    A("L_back:")
    A(f"    s_add_u32 s50, s50, {period}")
    A(f"    s_cmp_le_u32 s50, {meets[-1]}")
    A("    s_cbranch_scc1 L_meet")
    A("    s_endpgm")
    A("L_soft:")
    for kk in range(4):
        for i in range(8):
            A(f"    ds_read_b32 v{KP+8*kk+i}, v9 offset:{LD+1024*i+16*kk}")
        A("    s_waitcnt lgkmcnt(0)")
    A("    s_waitcnt vmcnt(0)")
    A("    s_mov_b32 s56, 0x3db504f3           ; 128^-0.5")
    A("    s_mov_b32 s57, 0x3fb8aa3b           ; log2(e)")
    A("    s_mov_b32 s58, 0xffff0000")
    for kk in range(4):
        for p in range(4):
            A(f"    v_cvt_pk_bf16_f32 v{KB+4*kk+p}, v{KP+8*kk+2*p}, v{KP+8*kk+2*p+1}")
    A("    s_nop 1")
    for kk in range(4):
        c = "0" if kk == 0 else f"v[{X}:{X+3}]"
        A(f"    v_mfma_f32_16x16x32_bf16 v[{X}:{X+3}], v[{KB+4*kk}:{KB+4*kk+3}], v[{Q+4*kk}:{Q+4*kk+3}], {c}")
    A("    s_nop 7                             ; lane (g, q): S[q][4g .. 4g+3]")

    def rnd():
        A(f"    v_cvt_pk_bf16_f32 v{a}, v{X}, v{X+1}")
        A(f"    v_cvt_pk_bf16_f32 v{b}, v{X+2}, v{X+3}")
        A(f"    v_lshlrev_b32 v{X}, 16, v{a}")
        A(f"    v_and_b32 v{X+1}, s58, v{a}")
        A(f"    v_lshlrev_b32 v{X+2}, 16, v{b}")
        A(f"    v_and_b32 v{X+3}, s58, v{b}")
    rnd()
    for r in range(4):
        A(f"    v_mul_f32 v{X+r}, s56, v{X+r}")
    rnd()

    def xred(op):
        A(f"    v_mov_b32 v{b}, v{a}")
        A("    s_nop 1")
        A(f"    v_permlane16_swap_b32 v{a}, v{b}")
        A(f"    {op} v{a}, v{a}, v{b}")
        A(f"    v_mov_b32 v{b}, v{a}")
        A("    s_nop 1")
        A(f"    v_permlane32_swap_b32 v{a}, v{b}")
        A(f"    {op} v{a}, v{a}, v{b}")
    A(f"    v_max_f32 v{a}, v{X}, v{X+1}")
    A(f"    v_max3_f32 v{a}, v{X+2}, v{X+3}, v{a}")
    xred("v_max_f32")
    for r in range(4):
        A(f"    v_sub_f32 v{X+r}, v{X+r}, v{a}")
    for r in range(4):
        A(f"    v_mul_f32 v{X+r}, s57, v{X+r}")
    for r in range(4):
        A(f"    v_exp_f32 v{X+r}, v{X+r}")
    A("    s_nop 0")
    A(f"    v_add_f32 v{a}, v{X}, v{X+1}")
    A(f"    v_add_f32 v{b}, v{X+2}, v{X+3}")
    A(f"    v_add_f32 v{a}, v{a}, v{b}")
    xred("v_add_f32")
    A(f"    v_rcp_f32 v{a}, v{a}")
    A("    s_nop 0")
    for r in range(4):
        A(f"    v_mul_f32 v{X+r}, v{X+r}, v{a}")
    A(f"    v_cvt_pk_bf16_f32 v{X+6}, v{X}, v{X+1}")
    A(f"    v_cvt_pk_bf16_f32 v{X+7}, v{X+2}, v{X+3}")
    A(f"    ds_write_b64 v4, v[{X+6}:{X+7}] offset:{LP}")
    A("    s_branch L_back")

    A("L_codeend:")
    A(f".if (L_codeend - L_pc) < {NK*1024}")
    A('.error "code prefetch runs past the code"')
    A(".endif")

    A('.section .rodata,"a"')
    A(".p2align 6")
    A(f".amdhsa_kernel {NAME}_kernel")
    A(f"  .amdhsa_next_free_vgpr {total}")
    A("  .amdhsa_next_free_sgpr 88")
    A(f"  .amdhsa_accum_offset {total}")
    A("  .amdhsa_group_segment_fixed_size 0")
    A("  .amdhsa_kernarg_size 64")
    A("  .amdhsa_user_sgpr_count 2")
    A("  .amdhsa_user_sgpr_kernarg_segment_ptr 1")
    A("  .amdhsa_system_sgpr_workgroup_id_x 1")
    A("  .amdhsa_float_denorm_mode_32 3")
    A(".end_amdhsa_kernel")
    return "\n".join(L) + "\n"


if __name__ == "__main__":
    out = sys.argv[1]
    kw = dict(a.split("=", 1) for a in sys.argv[2:])
    open(out, "w").write(gen(**kw))
```
